```python
import torch

def _softmax(x, axis=-1):
    return torch.softmax(x, dim=axis)
def _gelu(x):
    return torch.nn.functional.gelu(x, approximate="tanh")
def _silu(x):
    return torch.nn.functional.silu(x)
def _sigmoid(x):
    return torch.sigmoid(x)
def _layernorm(x, axis=-1, eps=1e-5):
    m = x.mean(dim=axis, keepdim=True)
    v = x.var(dim=axis, keepdim=True, unbiased=False)
    return (x - m) / torch.sqrt(v + eps)
def _scatter_add(tgt, idx, src, axis=0):
    return tgt.clone().index_add_(axis, idx, src)
def _segment_sum(src, seg, n):
    out = torch.zeros((n,) + src.shape[1:], dtype=src.dtype)
    return out.index_add_(0, seg, src)
def _pad(x, pw):
    flat = tuple(v for pair in reversed(pw) for v in pair)
    return torch.nn.functional.pad(x, flat)

kernel_name = 'sequential_preLN__mha_block__glu_gated_geglu__prompt'

def setup_inputs():

    _w = (lambda a: (lambda t: t.to(torch.bfloat16) if t.is_floating_point() else t)(torch.as_tensor(a)))
    def _A_setup():
        B, S, D, H = 1, 2048, 576, 32
        return {
            "x": _w((lambda *s: torch.randn(*s, dtype=torch.bfloat16) * 0.05)(B, S, D)),
            "wqkv": _w((lambda *s: torch.randn(*s, dtype=torch.bfloat16) * 0.05)(D, 3 * D)),
            "wo": _w((lambda *s: torch.randn(*s, dtype=torch.bfloat16) * 0.05)(D, D)),
        }
    _A_in = _A_setup()

    def _B_setup():
        B, S, Dm, Df = 1, 2048, 576, 4608
        return {
            "x": _w((lambda *s: torch.randn(*s, dtype=torch.bfloat16) * 0.05)(B, S, Dm)),
            "w_gate": _w((lambda *s: torch.randn(*s, dtype=torch.bfloat16) * 0.8)(Dm, Df) * (Dm ** -0.5)),
            "w_up": _w((lambda *s: torch.randn(*s, dtype=torch.bfloat16) * 0.8)(Dm, Df) * (Dm ** -0.5)),
            "w_down": _w((lambda *s: torch.randn(*s, dtype=torch.bfloat16) * 0.8)(Df, Dm) * (Df ** -0.5)),
        }
    _B_in = _B_setup()

    return {
        "A_x": _A_in["x"],
        "A_wqkv": _A_in["wqkv"],
        "A_wo": _A_in["wo"],
        "B_x": _B_in["x"],
        "B_w_gate": _B_in["w_gate"],
        "B_w_up": _B_in["w_up"],
        "B_w_down": _B_in["w_down"],
    }

def reference(A_x, A_wqkv, A_wo, B_x, B_w_gate, B_w_up, B_w_down):
    def _A_ref(x, wqkv, wo):
        B, S, D = x.shape
        H = 32
        Dh = D // H
        qkv = (lambda x, *d: x.permute(*d))((x @ wqkv).reshape(B, S, 3, H, Dh), 2, 0, 3, 1, 4)
        q, k, v = qkv[0], qkv[1], qkv[2]
        scores = torch.einsum("bhqd,bhkd->bhqk", q, k) * (Dh ** -0.5)
        p = _softmax(scores, axis=-1)
        o = torch.einsum("bhqk,bhkd->bhqd", p, v)
        return (lambda x, *d: x.permute(*d))(o, 0, 2, 1, 3).reshape(B, S, D) @ wo

    def _B_ref(x, w_gate, w_up, w_down):
        g = torch.einsum("bsd,df->bsf", x, w_gate)
        u = torch.einsum("bsd,df->bsf", x, w_up)
        h = _gelu(g) * u
        return torch.einsum("bsf,fd->bsd", h, w_down)

    x = A_x
    h = x + _A_ref(_layernorm(x, axis=-1), A_wqkv, A_wo)
    h2 = h + _B_ref(_layernorm(h, axis=-1), B_w_gate, B_w_up, B_w_down)
    return h2
```

```python
class Asm:
    def __init__(self):
        self.l = []
    def __call__(self, s=""):
        for x in s.split("\n"):
            x = x.strip()
            if not x: continue
            if x.endswith(":") or x.startswith("."): self.l.append(x)
            else: self.l.append("  " + x)
    def text(self): return "\n".join(self.l) + "\n"

class Alloc:
    def __init__(self, start, limit, kind):
        self.n = start; self.limit = limit; self.kind = kind; self.hi = start
    def __call__(self, cnt=1, align=1):
        self.n = (self.n + align - 1) // align * align
        b = self.n; self.n += cnt
        assert self.n <= self.limit, f"out of {self.kind} registers ({self.n})"
        self.hi = max(self.hi, self.n)
        return b

def vr(b, n=1, k="v"):
    return f"{k}{b}" if n == 1 else f"{k}[{b}:{b+n-1}]"
def sr(b, n=1): return vr(b, n, "s")
def ar(b, n=1): return vr(b, n, "a")

def srd(a, dst, ptr, off, size, tmp=None):
    if off:
        a(f"s_add_u32 s{dst}, s{ptr}, {off}")
        a(f"s_addc_u32 s{dst+1}, s{ptr+1}, 0")
    else:
        a(f"s_mov_b32 s{dst}, s{ptr}")
        a(f"s_mov_b32 s{dst+1}, s{ptr+1}")
    a(f"s_mov_b32 s{dst+2}, {size}")
    a(f"s_mov_b32 s{dst+3}, 0x00020000")

def kernel_begin(a, name):
    a(".text")
    a(f".globl {name}")
    a(".p2align 8")
    a(f".type {name},@function")
    a(f"{name}:")

def kernel_end(a, name, nvgpr, accum, nsgpr=96):
    a(f""".section .rodata,"a"
.p2align 6
.amdhsa_kernel {name}
.amdhsa_next_free_vgpr {nvgpr}
.amdhsa_next_free_sgpr {nsgpr}
.amdhsa_accum_offset {accum}
.amdhsa_group_segment_fixed_size 0
.amdhsa_kernarg_size 80
.amdhsa_user_sgpr_count 2
.amdhsa_user_sgpr_kernarg_segment_ptr 1
.amdhsa_system_sgpr_workgroup_id_x 1
.amdhsa_float_denorm_mode_32 3
.amdhsa_ieee_mode 0
.end_amdhsa_kernel""")

def magic_div(d, maxn, bits=16):
    for sh in range(bits, 32):
        m = -(-(1 << sh) // d)
        if (maxn - 1) * m >= (1 << 32): break
        if all(((n * m) >> sh) == n // d for n in range(maxn)): return m, sh
    raise ValueError("no magic")

WS = dict(
    QF1=0x0000000, QF2=0x0200000, KV=0x0300000, MEANX=0x0800000, WOP=0x0900000,
    OF=0x0A00000, XF=0x0D00000, HR=0x1000000, PSS=0x1300000, WGU=0x1400000,
    WD=0x2000000, HF=0x2600000, PART=0x3800000)
KVH = 155648
KVC = 19456
ARG = dict(x=0, wqkv=8, wo=16, bx=24, wg=32, wu=40, wd=48, out=56, dbg=64, ws=72)
```

```python
from asmlib import *

def wave_sum(a, v, t):
    a(f"s_nop 1")
    a(f"v_add_f32_dpp v{v}, v{v}, v{v} quad_perm:[1,0,3,2] row_mask:0xf bank_mask:0xf")
    a(f"s_nop 1")
    a(f"v_add_f32_dpp v{v}, v{v}, v{v} quad_perm:[2,3,0,1] row_mask:0xf bank_mask:0xf")
    a(f"s_nop 1")
    a(f"v_add_f32_dpp v{v}, v{v}, v{v} row_half_mirror row_mask:0xf bank_mask:0xf")
    a(f"s_nop 1")
    a(f"v_add_f32_dpp v{v}, v{v}, v{v} row_mirror row_mask:0xf bank_mask:0xf")
    a(f"v_mov_b32 v{t}, v{v}")
    a(f"s_nop 1")
    a(f"v_permlane16_swap_b32 v{t}, v{v}")
    a(f"v_add_f32 v{v}, v{v}, v{t}")
    a(f"v_mov_b32 v{t}, v{v}")
    a(f"s_nop 1")
    a(f"v_permlane32_swap_b32 v{t}, v{v}")
    a(f"v_add_f32 v{v}, v{v}, v{t}")

def gen_k0(name="prep_kernel", nwg=256):
    a = Asm()
    kernel_begin(a, name)
    NW = nwg * 4
    a(f"s_cmp_ge_u32 s2, {nwg}")
    a(f"s_cbranch_scc1 {name}_end")
    a("s_load_dwordx2 s[4:5], s[0:1], 72")
    a("s_load_dwordx4 s[8:11], s[0:1], 32")
    a("s_load_dwordx2 s[12:13], s[0:1], 48")
    a("s_load_dwordx2 s[14:15], s[0:1], 16")
    a("v_lshrrev_b32 v1, 6, v0")
    a("v_and_b32 v0, 63, v0")
    a("v_readfirstlane_b32 s16, v1")
    a("s_lshl_b32 s17, s2, 2")
    a("s_add_u32 s16, s16, s17")
    a("s_waitcnt lgkmcnt(0)")
    srd(a, 20, 4, WS["WGU"], 288 * 36864)
    srd(a, 24, 4, WS["WD"], 4 * 72 * 18432)
    srd(a, 28, 12, 0, 4608 * 1152)
    srd(a, 32, 4, WS["WOP"], 16 * 46080)
    srd(a, 36, 14, 0, 576 * 1152)
    a("v_lshrrev_b32 v2, 2, v0")
    a("v_and_b32 v3, 3, v0")
    a("s_mov_b32 s18, 9216")
    a("v_mul_lo_u32 v4, v2, s18")
    a("v_and_b32 v5, 1, v3")
    a("v_lshl_add_u32 v4, v5, 4, v4")
    a("v_cmp_gt_u32 vcc, 2, v3")
    a("v_mov_b32 v6, s10")
    a("v_mov_b32 v7, s8")
    a("v_cndmask_b32 v6, v6, v7, vcc")
    a("v_mov_b32 v7, s11")
    a("v_mov_b32 v8, s9")
    a("v_cndmask_b32 v7, v7, v8, vcc")
    a("v_add_co_u32 v6, vcc, v6, v4")
    a("s_nop 1")
    a("v_addc_co_u32 v7, vcc, 0, v7, vcc")
    a("v_lshlrev_b32 v9, 4, v0")
    a("s_mov_b32 s19, s16")
    m36, sh36 = magic_div(36, 2592)
    a(f"{name}_A:")
    a("s_cmp_ge_u32 s19, 10368")
    a(f"s_cbranch_scc1 {name}_Adone")
    a("s_and_b32 s40, s19, 3")
    a("s_lshr_b32 s41, s19, 2")
    a(f"s_mul_i32 s42, s41, {m36}")
    a(f"s_lshr_b32 s42, s42, {sh36}")
    a("s_mul_i32 s43, s42, 36")
    a("s_sub_u32 s43, s41, s43")
    a("s_lshl_b32 s44, s42, 2")
    a("s_add_u32 s44, s44, s40")
    a("s_mul_i32 s45, s43, 147456")
    a("s_lshl_b32 s46, s44, 5")
    a("s_add_u32 s45, s45, s46")
    a("v_add_co_u32 v10, vcc, s45, v6")
    a("s_nop 1")
    a("v_addc_co_u32 v11, vcc, 0, v7, vcc")
    a("global_load_dwordx4 v[12:15], v[10:11], off")
    a("s_mul_i32 s46, s44, 36864")
    a("s_lshl_b32 s47, s43, 10")
    a("s_add_u32 s46, s46, s47")
    a("s_waitcnt vmcnt(0)")
    a("buffer_store_dwordx4 v[12:15], v9, s[20:23], s46 offen")
    a(f"s_add_u32 s19, s19, {NW}")
    a(f"s_branch {name}_A")
    a(f"{name}_Adone:")
    a("v_mul_u32_u24 v4, 1152, v2")
    a("v_lshl_add_u32 v4, v3, 4, v4")
    a("s_mov_b32 s19, s16")
    a(f"{name}_B:")
    a("s_cmp_ge_u32 s19, 4608")
    a(f"s_cbranch_scc1 {name}_Bdone")
    a("s_and_b32 s40, s19, 3")
    a("s_bfe_u32 s41, s19, 0x20002")
    a("s_lshr_b32 s42, s19, 4")
    a("s_mul_i32 s43, s42, 18432")
    a("s_mul_i32 s44, s41, 288")
    a("s_add_u32 s43, s43, s44")
    a("s_lshl_b32 s44, s40, 6")
    a("s_add_u32 s43, s43, s44")
    a("buffer_load_dwordx4 v[12:15], v4, s[28:31], s43 offen")
    a("s_lshr_b32 s44, s42, 2")
    a("s_mul_i32 s45, s41, 72")
    a("s_add_u32 s44, s44, s45")
    a("s_mul_i32 s44, s44, 18432")
    a("s_lshl_b32 s45, s40, 12")
    a("s_add_u32 s44, s44, s45")
    a("s_and_b32 s45, s42, 3")
    a("s_lshl_b32 s45, s45, 10")
    a("s_add_u32 s44, s44, s45")
    a("s_waitcnt vmcnt(0)")
    a("buffer_store_dwordx4 v[12:15], v9, s[24:27], s44 offen")
    a(f"s_add_u32 s19, s19, {NW}")
    a(f"s_branch {name}_B")
    a(f"{name}_Bdone:")
    a("v_lshrrev_b32 v10, 1, v0")
    a("v_and_b32 v11, 1, v0")
    a("v_mul_u32_u24 v4, 1152, v10")
    a("v_lshl_add_u32 v4, v11, 4, v4")
    a("s_mov_b32 s19, s16")
    a(f"{name}_H:")
    a("s_cmp_ge_u32 s19, 576")
    a(f"s_cbranch_scc1 {name}_Hdone")
    a("s_and_b32 s41, s19, 3")
    a("s_lshr_b32 s42, s19, 2")
    a("s_mul_i32 s43, s42, 36864")
    a("s_mul_i32 s44, s41, 288")
    a("s_add_u32 s43, s43, s44")
    a("s_add_u32 s43, s43, 256")
    a("buffer_load_dwordx4 v[12:15], v4, s[28:31], s43 offen")
    a("s_lshr_b32 s44, s42, 1")
    a("s_mul_i32 s45, s41, 72")
    a("s_add_u32 s44, s44, s45")
    a("s_mul_i32 s44, s44, 18432")
    a("s_add_u32 s44, s44, 16384")
    a("s_and_b32 s45, s42, 1")
    a("s_lshl_b32 s45, s45, 10")
    a("s_add_u32 s44, s44, s45")
    a("s_waitcnt vmcnt(0)")
    a("buffer_store_dwordx4 v[12:15], v9, s[24:27], s44 offen")
    a(f"s_add_u32 s19, s19, {NW}")
    a(f"s_branch {name}_H")
    a(f"{name}_Hdone:")
    a(f"s_cmp_ge_u32 s16, 576")
    a(f"s_cbranch_scc1 {name}_end")
    a("s_lshr_b32 s40, s16, 4")
    a("s_and_b32 s41, s16, 15")
    a("s_mul_i32 s42, s40, 18")
    a("s_and_b32 s43, s40, 1")
    a("s_lshl_b32 s43, s43, 1")
    a("s_add_u32 s42, s42, s43")
    a("s_add_u32 s42, s42, s41")
    a("s_sub_u32 s44, s40, 32")
    a("s_lshl_b32 s44, s44, 3")
    a("s_bfe_u32 s45, s41, 0x10002")
    a("s_lshl_b32 s45, s45, 2")
    a("s_add_u32 s44, s44, s45")
    a("s_lshr_b32 s45, s41, 3")
    a("s_lshl_b32 s45, s45, 1")
    a("s_add_u32 s44, s44, s45")
    a("s_mul_i32 s44, s44, 18")
    a("s_and_b32 s45, s41, 3")
    a("s_add_u32 s44, s44, s45")
    a("s_add_u32 s44, s44, 16")
    a("s_cmp_lt_u32 s40, 32")
    a("s_cselect_b32 s42, s42, s44")
    a("s_mul_i32 s42, s42, 1152")
    a("v_mul_u32_u24 v4, 72, v2")
    a("v_lshl_add_u32 v5, v3, 4, v4")
    a("buffer_load_dwordx4 v[12:15], v5, s[36:39], s42 offen")
    a("buffer_load_dwordx2 v[16:17], v4, s[36:39], s42 offen offset:64")
    a("v_mov_b32 v20, 0x3f803f80")
    a("v_mov_b32 v21, 0")
    a("v_mov_b32 v22, 0")
    a("s_waitcnt vmcnt(0)")
    for i in range(4): a(f"v_dot2_f32_bf16 v21, v{12+i}, v20, v21")
    for i in range(2): a(f"v_dot2_f32_bf16 v22, v{16+i}, v20, v22")
    a("s_nop 2")
    a("v_mul_f32 v22, 0.5, v22")
    a("v_mul_f32 v22, 0.5, v22")
    a("v_add_f32 v21, v21, v22")
    wave_sum(a, 21, 23)
    a(f"v_mul_f32 v21, {hex(0x3ae38e39)}, v21")
    a("v_cvt_pk_bf16_f32 v18, v21, v21")
    a("v_lshlrev_b32 v23, 16, v18")
    a("v_sub_f32 v23, v21, v23")
    a("v_cvt_pk_bf16_f32 v18, v21, v23")
    a("v_mov_b32 v19, 0")
    a("s_mov_b32 s46, 46080")
    a("v_mul_lo_u32 v4, v2, s46")
    a("v_lshl_add_u32 v5, v3, 4, v4")
    a("s_lshl_b32 s47, s16, 6")
    a("buffer_store_dwordx4 v[12:15], v5, s[32:35], s47 offen")
    a("s_lshl_b32 s47, s16, 4")
    a("s_add_u32 s47, s47, 36864")
    a("buffer_store_dwordx4 v[16:19], v4, s[32:35], s47 offen")
    a(f"{name}_end:")
    a("s_endpgm")
    kernel_end(a, name, 32, 32)
    return a.text()
```

```python
from asmlib import *

def gen_k1(name="qkv_kernel"):
    a = Asm()
    kernel_begin(a, name)
    V = Alloc(1, 256, "v")
    acc = [[V(16, 4) for n in range(2)] for t in range(2)]
    acce = V(16, 4)
    Bf = [[V(4, 4) for t in range(2)] for p in range(2)]
    Af = [[V(4, 4) for n in range(3)] for p in range(2)]
    xaddr = [[V() for u in range(4)] for t in range(2)]
    wad = [[V() for sl in range(2)] for n in range(3)]
    vx = [V() for _ in range(2)]
    vw = [V() for _ in range(5)]
    ssum, sssq, csm, cse, ones = V(), V(), V(), V(), V()
    t0, t1, t2, t3, t4, t5 = [V() for _ in range(6)]
    lane, vh = V(), V()
    XS = 16384; WB = 65536; WSZ = 20480; EX = 147456

    a("s_cmp_ge_u32 s2, 192")
    a(f"s_cbranch_scc1 {name}_end")
    a("s_load_dwordx4 s[4:7], s[0:1], 0")
    a("s_load_dwordx2 s[8:9], s[0:1], 72")
    a(f"v_lshrrev_b32 v{t0}, 6, v0")
    a(f"v_and_b32 v{lane}, 63, v0")
    a(f"v_readfirstlane_b32 s24, v{t0}")
    a("s_and_b32 s25, s2, 7")
    a("s_lshr_b32 s26, s2, 3")
    a("s_and_b32 s27, s25, 3")
    a("s_lshl_b32 s27, s27, 2")
    a("s_and_b32 s28, s26, 3")
    a("s_add_u32 s27, s27, s28")
    a("s_lshr_b32 s28, s25, 2")
    a("s_mul_i32 s28, s28, 6")
    a("s_lshr_b32 s29, s26, 2")
    a("s_add_u32 s28, s28, s29")
    a("s_lshr_b32 s29, s28, 2")
    a("s_and_b32 s30, s28, 3")
    a("s_lshr_b32 s31, s24, 1")
    a("s_and_b32 s32, s24, 1")
    a(f"v_lshrrev_b32 v{vh}, 5, v{lane}")
    for par in range(2):
        a(f"v_lshrrev_b32 v{t0}, 4, v{lane}")
        a(f"v_add_u32 v{t0}, {4*par}, v{t0}")
        a(f"v_and_b32 v{t1}, 7, v{lane}")
        a(f"v_xor_b32 v{t0}, v{t0}, v{t1}")
        a(f"v_lshlrev_b32 v{t0}, 4, v{t0}")
        a(f"v_lshrrev_b32 v{t1}, 3, v{lane}")
        a(f"v_mul_u32_u24 v{t1}, 1152, v{t1}")
        a(f"v_add_u32 v{vx[par]}, v{t0}, v{t1}")
    m20, sh20 = magic_div(20, 1280)
    a("s_mul_i32 s33, s24, 320")
    a(f"s_mov_b32 s34, {m20}")
    for i in range(5):
        a(f"v_add_u32 v{t0}, s33, v{lane}")
        if i: a(f"v_add_u32 v{t0}, {64*i}, v{t0}")
        a(f"v_mul_lo_u32 v{t1}, v{t0}, s34")
        a(f"v_lshrrev_b32 v{t1}, {sh20}, v{t1}")
        a(f"v_mul_u32_u24 v{t2}, 20, v{t1}")
        a(f"v_sub_u32 v{t2}, v{t0}, v{t2}")
        a(f"v_lshrrev_b32 v{t3}, 2, v{t2}")
        a(f"v_mul_u32_u24 v{t3}, 72, v{t3}")
        a(f"v_and_b32 v{t4}, 3, v{t2}")
        a(f"v_lshl_add_u32 v{t3}, v{t4}, 4, v{t3}")
        a(f"v_lshrrev_b32 v{t5}, 1, v{t4}")
        a(f"v_lshl_add_u32 v{t3}, v{t5}, 3, v{t3}")
        a(f"v_mul_u32_u24 v{t4}, 72, v{t4}")
        a(f"v_add_u32 v{t4}, 32, v{t4}")
        a(f"v_cmp_gt_u32 vcc, 16, v{t2}")
        a(f"v_mul_u32_u24 v{t1}, 3456, v{t1}")
        a("s_nop 0")
        a(f"v_cndmask_b32 v{t3}, v{t4}, v{t3}, vcc")
        a(f"v_add_u32 v{vw[i]}, v{t1}, v{t3}")
    a("s_waitcnt lgkmcnt(0)")
    srd(a, 12, 4, 0, 2048 * 1152)
    srd(a, 16, 6, 0, 576 * 3456)
    srd(a, 20, 8, 0, 0x900000)
    a("s_lshl_b32 s35, s27, 7")
    a("s_lshl_b32 s36, s24, 5")
    a("s_add_u32 s35, s35, s36")
    a("s_mul_i32 s35, s35, 1152")
    a("s_mul_i32 s36, s29, 1152")
    a("s_mul_i32 s37, s30, 288")
    a("s_add_u32 s36, s36, s37")
    a("s_lshl_b32 s37, s24, 12")
    a("s_mul_i32 s38, s24, 5120")
    a(f"s_add_u32 s38, s38, {WB}")

    def dma_stage(s):
        sl = s % 4
        out = []
        for i in range(4):
            out.append([f"s_add_u32 m0, s37, {sl*XS + i*1024}",
                        f"s_add_u32 s40, s35, {i*9216 + s*128}",
                        f"buffer_load_dwordx4 v{vx[i&1]}, s[12:15], s40 offen lds"])
        for i in range(5):
            out.append([f"s_add_u32 m0, s38, {sl*WSZ + i*1024}",
                        f"s_add_u32 s40, s36, {s*64*3456}",
                        f"buffer_load_dwordx4 v{vw[i]}, s[16:19], s40 offen lds"])
        return out
    for s in range(3):
        for grp in dma_stage(s):
            for x in grp: a(x)

    a(f"v_and_b32 v{t0}, 31, v{lane}")
    a(f"v_lshrrev_b32 v{t1}, 1, v{t0}")
    a(f"v_and_b32 v{t1}, 7, v{t1}")
    for t in range(2):
        a(f"s_xor_b32 s40, s32, {t}")
        a("s_lshl_b32 s41, s31, 1")
        a("s_add_u32 s40, s40, s41")
        a("s_lshl_b32 s40, s40, 12")
        a(f"v_lshl_add_u32 v{t2}, v{t0}, 7, s40")
        for u in range(4):
            a(f"v_add_u32 v{t3}, {2*u}, v{vh}")
            a(f"v_xor_b32 v{t3}, v{t3}, v{t1}")
            a(f"v_lshl_add_u32 v{xaddr[t][u]}, v{t3}, 4, v{t2}")
    a(f"v_bfe_u32 v{t0}, v{lane}, 2, 2")
    a(f"v_lshl_add_u32 v{t0}, v{vh}, 3, v{t0}")
    a(f"v_mul_u32_u24 v{t0}, 320, v{t0}")
    a(f"v_add_u32 v{t0}, {WB}, v{t0}")
    a(f"v_and_b32 v{t1}, 3, v{lane}")
    a(f"v_lshlrev_b32 v{t2}, 4, v{t1}")
    a(f"v_add_u32 v{t2}, v{t2}, v{t0}")
    a(f"v_add_u32 v{wad[2][0]}, 256, v{t2}")
    a(f"v_add_u32 v{wad[2][1]}, {256+2*WSZ}, v{t2}")
    a(f"v_and_b32 v{t2}, 1, v{t1}")
    a(f"v_lshrrev_b32 v{t3}, 1, v{t1}")
    a(f"v_lshl_add_u32 v{t2}, v{t2}, 1, v{t3}")
    a(f"v_lshl_add_u32 v{t0}, v{t2}, 3, v{t0}")
    a(f"v_bfe_u32 v{t2}, v{lane}, 4, 1")
    a(f"v_lshl_add_u32 v{t0}, v{t2}, 5, v{t0}")
    for n in range(2):
        a(f"s_xor_b32 s40, s31, {n}")
        a("s_lshl_b32 s41, s32, 1")
        a("s_add_u32 s40, s40, s41")
        a("s_lshl_b32 s40, s40, 6")
        a(f"v_add_u32 v{wad[n][0]}, s40, v{t0}")
        a(f"v_add_u32 v{wad[n][1]}, {2*WSZ}, v{wad[n][0]}")
    for t in range(2):
        for n in range(2):
            for i in range(16): a(f"v_mov_b32 v{acc[t][n]+i}, 0")
    for i in range(16): a(f"v_mov_b32 v{acce+i}, 0")
    for r in (ssum, sssq, csm, cse): a(f"v_mov_b32 v{r}, 0")
    a(f"v_mov_b32 v{ones}, 0x3f803f80")

    def reads(n):
        s, u, p = n >> 2, n & 3, n & 1
        sl = s % 4
        out = []
        for t in range(2):
            out.append(f"ds_read_b128 {vr(Bf[p][t],4)}, v{xaddr[t][u]} offset:{sl*XS}")
        for nn in range(3):
            for jj in range(2):
                off = (sl & 1) * WSZ + (16*u + 4*jj) * 320
                out.append(f"ds_read_b64_tr_b16 {vr(Af[p][nn]+2*jj,2)}, v{wad[nn][sl>>1]} offset:{off}")
        return out

    a("s_waitcnt vmcnt(18)")
    a("s_barrier")
    for x in reads(0): a(x)
    for n in range(36):
        s, u, p = n >> 2, n & 3, n & 1
        fill = []
        if u == 3 and s < 8:
            a(f"s_waitcnt vmcnt({9 if s + 2 <= 8 else 0})")
            a("s_barrier")
            if s + 3 <= 8:
                for grp in dma_stage(s + 3): fill += grp
        rd = reads(n + 1) if n < 35 else []
        dots = []
        for i in range(4):
            dots.append(f"v_dot2c_f32_bf16 v{ssum}, v{Bf[p][0]+i}, v{ones}")
            dots.append(f"v_dot2c_f32_bf16 v{sssq}, v{Bf[p][0]+i}, v{Bf[p][0]+i}")
            dots.append(f"v_dot2c_f32_bf16 v{csm}, v{Af[p][0]+i}, v{ones}")
            dots.append(f"v_dot2c_f32_bf16 v{cse}, v{Af[p][2]+i}, v{ones}")
        mf = []
        for t in range(2):
            for nn in range(2):
                mf.append(f"v_mfma_f32_32x32x16_bf16 {vr(acc[t][nn],16)}, {vr(Af[p][nn],4)}, {vr(Bf[p][t],4)}, {vr(acc[t][nn],16)}")
        mf.append(f"v_mfma_f32_32x32x16_bf16 {vr(acce,16)}, {vr(Af[p][2],4)}, {vr(Bf[p][0],4)}, {vr(acce,16)}")
        a("s_waitcnt lgkmcnt(0)")
        other = rd + dots
        per = -(-len(other) // 5)
        perf = -(-len(fill) // 5) if fill else 0
        if perf % 3: perf += 3 - perf % 3
        for g in range(5):
            a(mf[g])
            for x in other[g*per:(g+1)*per]: a(x)
            for x in fill[g*perf:(g+1)*perf]: a(x)
    a("s_nop 2")
    for r in (ssum, sssq, csm, cse):
        a(f"v_mov_b32 v{t0}, v{r}")
        a("s_nop 1")
        a(f"v_permlane32_swap_b32 v{t0}, v{r}")
        a(f"v_add_f32 v{r}, v{r}, v{t0}")
    a(f"v_and_b32 v{t0}, 31, v{lane}")
    a("s_lshl_b32 s40, s32, 1")
    a("s_add_u32 s40, s40, s31")
    a("s_lshl_b32 s40, s40, 7")
    a(f"v_lshl_add_u32 v{t1}, v{t0}, 2, s40")
    a(f"ds_write_b32 v{t1}, v{csm} offset:{EX}") if EX < 65536 else None
    a(f"v_add_u32 v{t1}, {EX}, v{t1}")
    a(f"ds_write_b32 v{t1}, v{csm}")
    a(f"v_lshlrev_b32 v{t2}, 2, v{t0}")
    a(f"v_add_u32 v{t2}, {EX+512}, v{t2}")
    a(f"ds_write_b32 v{t2}, v{cse}")
    a("s_lshl_b32 s40, s24, 8")
    a(f"s_add_u32 s40, s40, {EX+1024}")
    a(f"v_lshl_add_u32 v{t3}, v{t0}, 3, s40")
    a(f"v_mov_b32 v{t4}, v{ssum}")
    a(f"v_mov_b32 v{t5}, v{sssq}")
    assert t5 == t4 + 1
    if t4 % 2:
        a(f"ds_write2_b32 v{t3}, v{t4}, v{t5} offset0:0 offset1:1")
    else:
        a(f"ds_write_b64 v{t3}, {vr(t4,2)}")
    a("s_waitcnt lgkmcnt(0)")
    a("s_barrier")
    cs = [V(16, 4) for n in range(2)]
    cx = V(8, 4)
    st = [V(2, 2) for t in range(2)]
    for n in range(2):
        a(f"s_xor_b32 s40, s31, {n}")
        a("s_lshl_b32 s41, s32, 1")
        a("s_add_u32 s40, s40, s41")
        a("s_lshl_b32 s40, s40, 7")
        a(f"s_add_u32 s40, s40, {EX}")
        a(f"v_lshl_add_u32 v{t1}, v{vh}, 4, s40")
        for j in range(4):
            a(f"ds_read_b128 {vr(cs[n]+4*j,4)}, v{t1} offset:{32*j}")
    a(f"v_lshlrev_b32 v{t1}, 4, v{vh}")
    a(f"v_add_u32 v{t1}, {EX+512}, v{t1}")
    for j in range(2):
        a(f"ds_read_b128 {vr(cx+4*j,4)}, v{t1} offset:{32*j}")
    for t in range(2):
        a(f"s_xor_b32 s40, s32, {t}")
        a("s_lshl_b32 s41, s31, 1")
        a("s_add_u32 s40, s40, s41")
        a("s_lshl_b32 s40, s40, 8")
        a(f"s_add_u32 s40, s40, {EX+1024}")
        a(f"v_lshl_add_u32 v{t1}, v{t0}, 3, s40")
        a(f"ds_read_b64 {vr(st[t],2)}, v{t1}")
    a("s_waitcnt lgkmcnt(0)")
    mean = [V() for _ in range(2)]; rs = [V() for _ in range(2)]
    a("s_mov_b32 s42, 0x3ae38e39")
    a("s_mov_b32 s43, 0x3727c5ac")
    a("s_cmp_eq_u32 s29, 0")
    a("s_cselect_b32 s44, 0x3eae1a93, 1.0")
    for t in range(2):
        a(f"v_mul_f32 v{mean[t]}, s42, v{st[t]}")
        a(f"v_mul_f32 v{t1}, s42, v{st[t]+1}")
        a(f"v_fma_f32 v{t1}, -v{mean[t]}, v{mean[t]}, v{t1}")
        a(f"v_max_f32 v{t1}, 0, v{t1}")
        a(f"v_add_f32 v{t1}, s43, v{t1}")
        a(f"v_rsq_f32 v{rs[t]}, v{t1}")
        a("s_nop 0")
        a(f"v_mul_f32 v{rs[t]}, s44, v{rs[t]}")
    a("s_cmp_lg_u32 s28, 0")
    a(f"s_cbranch_scc1 {name}_nomean")
    a("s_lshl_b32 s40, s27, 2")
    a("s_add_u32 s40, s40, s24")
    a("s_lshl_b32 s40, s40, 7")
    a(f"s_add_u32 s40, s40, {WS['MEANX']}")
    a(f"v_lshlrev_b32 v{t1}, 2, v{t0}")
    a(f"buffer_store_dword v{mean[0]}, v{t1}, s[20:23], s40 offen")
    a(f"{name}_nomean:")
    def norm(dst, accb, csb, nreg, t):
        for i in range(nreg):
            a(f"v_fma_f32 v{accb+i}, -v{mean[t]}, v{csb+i}, v{accb+i}")
        for i in range(nreg):
            a(f"v_mul_f32 v{accb+i}, v{rs[t]}, v{accb+i}")
        for i in range(nreg // 2):
            a(f"v_cvt_pk_bf16_f32 v{dst+i}, v{accb+2*i}, v{accb+2*i+1}")
    vl = V()
    a("s_cmp_eq_u32 s29, 0")
    a(f"s_cselect_b32 s45, {WS['QF1']}, {WS['KV']}")
    a(f"s_mov_b32 s46, {KVH}")
    a(f"s_cselect_b32 s46, 65536, s46")
    a(f"v_lshlrev_b32 v{vl}, 4, v{lane}")
    a(f"v_mul_u32_u24 v{t1}, 40, v{t0}")
    a(f"v_lshl_add_u32 v{t1}, v{vh}, 4, v{t1}")
    a("s_cmp_eq_u32 s29, 2")
    a("s_cselect_b64 vcc, -1, 0")
    a(f"v_cndmask_b32 v{vl}, v{vl}, v{t1}, vcc")
    pk = V(8, 4)
    for t in range(2):
        a(f"s_xor_b32 s40, s32, {t}")
        a("s_lshl_b32 s41, s31, 1")
        a("s_add_u32 s40, s40, s41")
        a("s_lshl_b32 s41, s27, 2")
        a("s_add_u32 s48, s40, s41")
        a("s_lshr_b32 s40, s48, 3")
        a(f"s_mul_i32 s40, s40, {KVC}")
        a("s_and_b32 s41, s48, 7")
        a("s_lshl_b32 s49, s41, 10")
        a("s_add_u32 s49, s49, s40")
        a("s_mul_i32 s50, s41, 1280")
        a("s_add_u32 s50, s50, s40")
        a("s_add_u32 s50, s50, 9216")
        a("s_lshl_b32 s51, s48, 10")
        a("s_cmp_eq_u32 s29, 0")
        a("s_cselect_b32 s47, s51, s49")
        a("s_cmp_eq_u32 s29, 2")
        a("s_cselect_b32 s47, s50, s47")
        a("s_add_u32 s47, s47, s45")
        for n in range(2):
            norm(pk, acc[t][n], cs[n], 16, t)
            a(f"s_xor_b32 s40, s31, {n}")
            a("s_lshl_b32 s41, s32, 1")
            a("s_add_u32 s40, s40, s41")
            a("s_lshl_b32 s41, s30, 2")
            a("s_add_u32 s40, s40, s41")
            a("s_lshl_b32 s40, s40, 1")
            a("s_mul_i32 s40, s40, s46")
            a("s_add_u32 s40, s40, s47")
            a(f"buffer_store_dwordx4 {vr(pk,4)}, v{vl}, s[20:23], s40 offen")
            a("s_add_u32 s40, s40, s46")
            a(f"buffer_store_dwordx4 {vr(pk+4,4)}, v{vl}, s[20:23], s40 offen")
            a("s_nop 1")
        if t == 0:
            norm(pk, acce, cx, 8, 0)
            a("s_cmp_eq_u32 s29, 2")
            a(f"s_cbranch_scc1 {name}_extv")
            a("s_lshl_b32 s51, s48, 7")
            a(f"s_add_u32 s51, s51, {WS['QF2']}")
            a("s_lshr_b32 s40, s48, 3")
            a(f"s_mul_i32 s40, s40, {KVC}")
            a("s_and_b32 s41, s48, 7")
            a("s_lshl_b32 s41, s41, 7")
            a("s_add_u32 s40, s40, s41")
            a(f"s_add_u32 s40, s40, {WS['KV'] + 8192}")
            a("s_cmp_eq_u32 s29, 0")
            a("s_cselect_b32 s51, s51, s40")
            a(f"s_mov_b32 s52, {KVH}")
            a(f"s_cselect_b32 s52, 8192, s52")
            for j in range(2):
                a("s_lshl_b32 s40, s30, 2")
                a(f"s_add_u32 s40, s40, {2*j}")
                a(f"v_add_u32 v{t1}, s40, v{vh}")
                a(f"v_lshlrev_b32 v{t1}, 1, v{t1}")
                a(f"v_mul_lo_u32 v{t1}, v{t1}, s52")
                a(f"v_lshl_add_u32 v{t1}, v{t0}, 2, v{t1}")
                a(f"buffer_store_dword v{pk+2*j}, v{t1}, s[20:23], s51 offen")
                a("s_add_u32 s40, s51, s52")
                a(f"buffer_store_dword v{pk+2*j+1}, v{t1}, s[20:23], s40 offen")
            a(f"s_branch {name}_extdone")
            a(f"{name}_extv:")
            a(f"s_add_u32 s51, s50, {WS['KV'] + 32}")
            a(f"s_mov_b32 s52, {KVH}")
            for j in range(2):
                a("s_lshl_b32 s40, s30, 2")
                a(f"s_add_u32 s40, s40, {2*j}")
                a(f"v_add_u32 v{t1}, s40, v{vh}")
                a(f"v_lshlrev_b32 v{t1}, 1, v{t1}")
                a(f"v_mul_lo_u32 v{t1}, v{t1}, s52")
                a(f"v_mul_u32_u24 v{t2}, 40, v{t0}")
                a(f"v_add_u32 v{t1}, v{t1}, v{t2}")
                for hb in range(2):
                    d = pk + 4 + 2 * hb
                    a(f"v_mov_b32 v{d}, v{pk+2*j+hb}")
                    a(f"v_mov_b32 v{d+1}, 0x00003f80")
                    if hb: a("s_add_u32 s40, s51, s52")
                    else: a("s_mov_b32 s40, s51")
                    a(f"buffer_store_dwordx2 {vr(d,2)}, v{t1}, s[20:23], s40 offen")
            a(f"{name}_extdone:")
    a(f"{name}_end:")
    a("s_endpgm")
    kernel_end(a, name, V.hi, (V.hi + 3) // 4 * 4)
    return a.text(), EX + 2048
```

```python
import re, sys

TRANS = ("v_exp_", "v_log_", "v_rcp_", "v_rsq_", "v_sqrt_", "v_sin_", "v_cos_")

def regs_of(tok):
    tok = tok.strip()
    neg = tok.lstrip("-")
    if neg.startswith("abs(") or neg.startswith("|"):
        neg = neg.replace("abs(", "").replace(")", "").replace("|", "")
    m = re.fullmatch(r"([vas])(\d+)", neg)
    if m: return [(m.group(1), int(m.group(2)))]
    m = re.fullmatch(r"([vas])\[(\d+):(\d+)\]", neg)
    if m: return [(m.group(1), i) for i in range(int(m.group(2)), int(m.group(3)) + 1)]
    if neg == "vcc": return [("s", "vcc")]
    if neg in ("vcc_lo", "vcc_hi"): return [("s", "vcc")]
    if neg == "exec": return [("s", "exec")]
    if neg == "m0": return [("s", "m0")]
    return []

class I:
    def __init__(self, text, idx):
        self.text = text; self.idx = idx
        t = text.split(None, 1)
        self.op = t[0]
        rest = t[1] if len(t) > 1 else ""
        parts = [p.strip() for p in re.split(r",(?![^\[]*\])", rest)] if rest else []
        mods = ""
        if parts:
            last = parts[-1].split()
            if len(last) > 1:
                parts[-1] = last[0]; mods = " ".join(last[1:])
        self.ops = parts; self.mods = mods
        self.defs = []; self.uses = []
        op = self.op
        self.mfma = op.startswith("v_mfma")
        self.valu = op.startswith("v_") and not self.mfma
        self.trans = op.startswith(TRANS)
        self.dpp = any(k in mods for k in ("row_", "quad_perm", "wave_", "dpp"))
        self.vmem = op.startswith(("buffer_", "global_", "flat_"))
        self.ds = op.startswith("ds_")
        self.salu = op.startswith("s_")
        self.ldsdma = self.vmem and (" lds" in (" " + mods) or "load_lds" in op)
        R = [regs_of(p) for p in parts]
        self.passes = 0
        if self.mfma:
            self.passes = 8 if "32x32" in op else 4
            self.D = R[0]; self.A = R[1]; self.B = R[2]; self.C = R[3] if len(R) > 3 else []
            self.defs = self.D; self.uses = self.A + self.B + self.C
        elif self.valu:
            if op.startswith("v_cmp"):
                self.defs = R[0]; self.uses = sum(R[1:], [])
            elif op.startswith(("v_add_co", "v_sub_co", "v_addc_co", "v_subb_co", "v_subrev_co")):
                self.defs = R[0] + R[1]; self.uses = sum(R[2:], [])
            elif op.startswith("v_permlane32_swap") or op.startswith("v_permlane16_swap"):
                self.defs = R[0] + R[1]; self.uses = R[0] + R[1]
            elif op.startswith(("v_fmac", "v_dot2c", "v_writelane", "v_mac")):
                self.defs = R[0]; self.uses = sum(R, [])
            elif op.startswith("v_nop"):
                pass
            else:
                self.defs = R[0]; self.uses = sum(R[1:], [])
                if "UNUSED_PRESERVE" in mods or self.dpp: self.uses += R[0]
        elif self.ds:
            if op.startswith(("ds_read", "ds_bpermute", "ds_permute", "ds_swizzle")):
                self.defs = R[0]; self.uses = sum(R[1:], [])
            else:
                self.uses = sum(R, [])
        elif self.vmem:
            if self.ldsdma:
                self.uses = sum(R, []) + [("s", "m0")]
            elif "load" in op:
                self.defs = R[0]; self.uses = sum(R[1:], [])
            elif "atomic" in op:
                self.uses = sum(R, [])
                if "sc0" in mods: self.defs = R[0]
            else:
                self.uses = sum(R, [])
                if op.startswith("buffer_"): self.sdata = R[0]
                else: self.sdata = R[1]
        elif self.salu:
            if op.startswith(("s_cmp", "s_waitcnt", "s_nop", "s_barrier", "s_branch", "s_cbranch", "s_endpgm", "s_setprio", "s_sleep", "s_bitcmp")):
                self.uses = sum(R, [])
            else:
                self.defs = R[0] if R else []; self.uses = sum(R[1:], [])
                if "saveexec" in op: self.defs = self.defs + [("s", "exec")]
        self.states = 1
        if op == "s_nop": self.states = int(parts[0], 0) + 1

def vset(l): return {r for r in l if r[0] in "va"}
def sset(l): return {r for r in l if r[0] == "s"}

def required(p, c):
    need = 0; why = ""
    def up(n, w):
        nonlocal need, why
        if n > need: need = n; why = w
    pd = vset(p.defs)
    if p.valu and pd:
        if c.mfma and pd & vset(c.uses): up(2, "VALU->MFMA operand")
        if c.valu and c.op.startswith("v_permlane") and pd & vset(c.uses): up(2, "VALU->permlane")
        if c.valu and c.dpp and pd & vset(c.uses): up(2, "VALU->DPP")
        if c.op.startswith(("v_readlane", "v_readfirstlane")) and pd & vset(c.uses): up(1, "VALU->readlane")
        if p.trans and c.valu and not c.trans and pd & vset(c.uses): up(1, "trans->VALU")
        if p.trans and (c.mfma) and pd & vset(c.uses): up(2, "trans->MFMA")
    if p.op.startswith("v_dot") and pd:
        if c.op == p.op:
            srcab = set(sum([regs_of(x) for x in (c.ops[1:3])], []))
            if pd & srcab: up(3, "DLop->same op srcA/B")
        elif pd & (vset(c.uses) | vset(c.defs)): up(3, "DLop->other op")
    if p.valu and sset(p.defs):
        sd = sset(p.defs)
        if c.valu and sd & sset(c.uses): up(2, "VALU sgpr write->VALU read")
        if c.vmem and sd & sset(c.uses): up(5, "VALU sgpr write->VMEM")
        if c.op.startswith(("v_readlane", "v_writelane")) and sd & sset(c.uses): up(4, "VALU sgpr->lane select")
    if p.salu and ("s", "m0") in p.defs and c.ldsdma: up(1, "M0->LDS DMA")
    if p.mfma:
        D = set(p.D); n = 12 if p.passes == 8 else 8
        if c.mfma:
            if D & (set(c.A) | set(c.B)): up(n, "MFMA D->MFMA A/B")
            if D & set(c.C) and (set(c.C) != D or c.passes != p.passes): up(n - 2, "MFMA D->MFMA C overlap")
        elif c.valu:
            if D & (vset(c.uses) | vset(c.defs)): up(n, "MFMA D->VALU")
        elif c.vmem or c.ds:
            if D & (vset(c.uses) | vset(c.defs)): up(n, "MFMA D->mem")
        if c.valu and set(p.C) & vset(c.defs): up(7 if p.passes == 8 else 3, "MFMA C WAR VALU")
    if p.vmem and hasattr(p, "sdata") and ("x4" in p.op or "x3" in p.op):
        if c.valu and set(p.sdata) & vset(c.defs): up(2, "wide store data WAR")
        elif (c.ds or c.vmem or c.mfma) and set(p.sdata) & vset(c.defs): up(1, "wide store data WAR")
    return need, why

def check(asm_text, verbose=True):
    lines = []
    labels = {}
    for raw in asm_text.splitlines():
        s = raw.split(";")[0].split("//")[0].strip()
        if not s or s.startswith("."): continue
        m = re.fullmatch(r"([\w.$]+):", s)
        if m: labels[m.group(1)] = len(lines); continue
        lines.append(s)
    ins = [I(s, i) for i, s in enumerate(lines)]
    def succ(i):
        x = ins[i]
        if x.op == "s_endpgm": return []
        if x.op == "s_branch": return [labels[x.ops[0]]]
        r = [i + 1] if i + 1 < len(ins) else []
        if x.op.startswith("s_cbranch"): r.append(labels[x.ops[0]])
        return r
    nerr = 0
    for p in ins:
        if not (p.valu or p.mfma or p.vmem or p.salu): continue
        if p.salu and ("s", "m0") not in p.defs: continue
        maxd = 12 if p.mfma else 5
        seen = {}
        stack = [(j, 0) for j in succ(p.idx)]
        while stack:
            j, d = stack.pop()
            if d >= maxd: continue
            if seen.get(j, 99) <= d: continue
            seen[j] = d
            c = ins[j]
            need, why = required(p, c)
            if need > d:
                nerr += 1
                if verbose: print(f"HAZARD {why}: need {need} have {d}\n   [{p.idx}] {p.text}\n   [{c.idx}] {c.text}")
            for k in succ(j): stack.append((k, d + c.states))
    return nerr

if __name__ == "__main__":
    n = check(open(sys.argv[1]).read())
    print("hazards:", n)
```

```python
import sys, os
sys.path.insert(0, os.path.dirname(__file__))
sys.path.insert(0, os.path.join(os.path.dirname(__file__), ".."))
from asmlib import *
import hazard
import k0, k1

def build(which=None):
    parts = []
    launches = []
    def add(name, text, grid, block, lds):
        parts.append(text); launches.append((name, grid, block, lds))
    t, lds = k1.gen_k1(); add("qkv_kernel", t, 256, 512, lds)
    for modname, fn, kname in EXTRA:
        mod = __import__(modname)
        t, grid, block, lds = getattr(mod, fn)()
        add(kname, t, grid, block, lds)
    hdr = open(os.path.join(os.path.dirname(__file__), "header.txt")).read()
    for n, g, b, l in launches:
        hdr += f"; @launch kernel={n} grid=({g},1,1) block=({b},1,1) lds={l}\n"
    body = '.amdgcn_target "amdgcn-amd-amdhsa--gfx950"\n' + "".join(parts)
    n = hazard.check(body)
    print("hazards:", n)
    return hdr + body

EXTRA = []
if __name__ == "__main__":
    import importlib
    spec = os.path.join(os.path.dirname(__file__), "extra.txt")
    if os.path.exists(spec):
        for line in open(spec):
            if line.strip(): EXTRA.append(tuple(line.split()))
    out = sys.argv[1]
    open(out, "w").write(build())
```

```python
class Asm:
    def __init__(self):
        self.l = []
    def __call__(self, s=""):
        for x in s.split("\n"):
            x = x.strip()
            if not x: continue
            if x.endswith(":") or x.startswith("."): self.l.append(x)
            else: self.l.append("  " + x)
    def text(self): return "\n".join(self.l) + "\n"

class Alloc:
    def __init__(self, start, limit, kind):
        self.n = start; self.limit = limit; self.kind = kind; self.hi = start
    def __call__(self, cnt=1, align=1):
        self.n = (self.n + align - 1) // align * align
        b = self.n; self.n += cnt
        assert self.n <= self.limit, f"out of {self.kind} registers ({self.n})"
        self.hi = max(self.hi, self.n)
        return b

def vr(b, n=1, k="v"):
    return f"{k}{b}" if n == 1 else f"{k}[{b}:{b+n-1}]"
def sr(b, n=1): return vr(b, n, "s")
def ar(b, n=1): return vr(b, n, "a")

def srd(a, dst, ptr, off, size, tmp=None):
    if off:
        a(f"s_add_u32 s{dst}, s{ptr}, {off}")
        a(f"s_addc_u32 s{dst+1}, s{ptr+1}, 0")
    else:
        a(f"s_mov_b32 s{dst}, s{ptr}")
        a(f"s_mov_b32 s{dst+1}, s{ptr+1}")
    a(f"s_mov_b32 s{dst+2}, {size}")
    a(f"s_mov_b32 s{dst+3}, 0x00020000")

def kernel_begin(a, name):
    a(".text")
    a(f".globl {name}")
    a(".p2align 8")
    a(f".type {name},@function")
    a(f"{name}:")

def kernel_end(a, name, nvgpr, accum, nsgpr=96):
    a(f""".section .rodata,"a"
.p2align 6
.amdhsa_kernel {name}
.amdhsa_next_free_vgpr {nvgpr}
.amdhsa_next_free_sgpr {nsgpr}
.amdhsa_accum_offset {accum}
.amdhsa_group_segment_fixed_size 0
.amdhsa_kernarg_size 80
.amdhsa_user_sgpr_count 2
.amdhsa_user_sgpr_kernarg_segment_ptr 1
.amdhsa_system_sgpr_workgroup_id_x 1
.amdhsa_float_denorm_mode_32 3
.amdhsa_ieee_mode 0
.end_amdhsa_kernel""")

def magic_div(d, maxn, bits=16):
    for sh in range(bits, 32):
        m = -(-(1 << sh) // d)
        if (maxn - 1) * m >= (1 << 32): break
        if all(((n * m) >> sh) == n // d for n in range(maxn)): return m, sh
    raise ValueError("no magic")

WS = dict(
    QF1=0x0000000, QF2=0x0200000, KV=0x0300000, MEANX=0x0800000, WOP=0x0900000,
    OF=0x0A00000, XF=0x0D00000, HR=0x1000000, PSS=0x1300000, WGU=0x1400000,
    WD=0x2000000, HF=0x2600000, PART=0x3800000)
KVH = 155648
KVC = 19456
ARG = dict(x=0, wqkv=8, wo=16, bx=24, wg=32, wu=40, wd=48, out=56, dbg=64, ws=72)

import os
PROF = bool(os.environ.get("PROF"))
PROF_OFF = 0x5000000
def prof_start(a):
    if not PROF: return
    a("s_memtime s[80:81]")
    a("s_memrealtime s[82:83]")
def prof_mark(a, k):
    if not PROF: return
    a(f"s_memtime s[{64+2*k}:{65+2*k}]")
def prof_end(a, kidx, wsreg=8, nw=8):
    if not PROF: return
    a("s_waitcnt vmcnt(0) lgkmcnt(0)")
    a("s_memtime s[84:85]")
    a("s_memrealtime s[86:87]")
    a("s_waitcnt lgkmcnt(0)")
    a(f"s_add_u32 s88, s{wsreg}, {PROF_OFF + kidx * 0x100000}")
    a(f"s_addc_u32 s89, s{wsreg+1}, 0")
    a("s_mov_b32 s90, 0x100000")
    a("s_mov_b32 s91, 0x00020000")
    a("v_lshrrev_b32 v1, 6, v0")
    a("s_lshl_b32 s92, s2, 4")
    a("v_add_u32 v1, s92, v1")
    a("v_lshlrev_b32 v1, 6, v1")
    for i in range(8):
        a(f"v_mov_b32 v{2+i}, s{80+i}")
    for i in range(8):
        a(f"v_mov_b32 v{10+i}, s{64+i}")
    a("v_and_b32 v18, 63, v0")
    a("v_cmp_eq_u32 vcc, 0, v18")
    a("s_nop 1")
    a("s_and_saveexec_b64 s[92:93], vcc")
    for i in range(4):
        a(f"buffer_store_dwordx4 v[{2+4*i}:{5+4*i}], v1, s[88:91], 0 offen offset:{16*i}")
    a("s_mov_b64 exec, s[92:93]")
```

```python
from asmlib import *

def wave_sum(a, v, t):
    a(f"s_nop 1")
    a(f"v_add_f32_dpp v{v}, v{v}, v{v} quad_perm:[1,0,3,2] row_mask:0xf bank_mask:0xf")
    a(f"s_nop 1")
    a(f"v_add_f32_dpp v{v}, v{v}, v{v} quad_perm:[2,3,0,1] row_mask:0xf bank_mask:0xf")
    a(f"s_nop 1")
    a(f"v_add_f32_dpp v{v}, v{v}, v{v} row_half_mirror row_mask:0xf bank_mask:0xf")
    a(f"s_nop 1")
    a(f"v_add_f32_dpp v{v}, v{v}, v{v} row_mirror row_mask:0xf bank_mask:0xf")
    a(f"v_mov_b32 v{t}, v{v}")
    a(f"s_nop 1")
    a(f"v_permlane16_swap_b32 v{t}, v{v}")
    a(f"v_add_f32 v{v}, v{v}, v{t}")
    a(f"v_mov_b32 v{t}, v{v}")
    a(f"s_nop 1")
    a(f"v_permlane32_swap_b32 v{t}, v{v}")
    a(f"v_add_f32 v{v}, v{v}, v{t}")

def gen_k0(name="prep_kernel", nwg=256, jobs="ABC"):
    a = Asm()
    kernel_begin(a, name)
    NW = nwg * 4
    a(f"s_cmp_ge_u32 s2, {nwg}")
    a(f"s_cbranch_scc1 {name}_end")
    a("s_load_dwordx2 s[4:5], s[0:1], 72")
    a("s_load_dwordx4 s[8:11], s[0:1], 32")
    a("s_load_dwordx2 s[12:13], s[0:1], 48")
    a("s_load_dwordx2 s[14:15], s[0:1], 16")
    a("v_lshrrev_b32 v1, 6, v0")
    a("v_and_b32 v0, 63, v0")
    a("v_readfirstlane_b32 s16, v1")
    a("s_lshl_b32 s17, s2, 2")
    a("s_add_u32 s16, s16, s17")
    a("s_waitcnt lgkmcnt(0)")
    srd(a, 20, 4, WS["WGU"], 288 * 36864)
    srd(a, 24, 4, WS["WD"], 4 * 72 * 18432)
    srd(a, 28, 12, 0, 4608 * 1152)
    srd(a, 32, 4, WS["WOP"], 16 * 46080)
    srd(a, 36, 14, 0, 576 * 1152)
    a("v_lshrrev_b32 v2, 2, v0")
    a("v_and_b32 v3, 3, v0")
    if 'A' in jobs:
        a("v_lshrrev_b32 v2, 2, v0")
        a("v_and_b32 v3, 3, v0")
        a("s_mov_b32 s18, 9216")
        a("v_mul_lo_u32 v4, v2, s18")
        a("v_and_b32 v5, 1, v3")
        a("v_lshl_add_u32 v4, v5, 4, v4")
        a("v_cmp_gt_u32 vcc, 2, v3")
        a("v_mov_b32 v6, s10")
        a("v_mov_b32 v7, s8")
        a("v_cndmask_b32 v6, v6, v7, vcc")
        a("v_mov_b32 v7, s11")
        a("v_mov_b32 v8, s9")
        a("v_cndmask_b32 v7, v7, v8, vcc")
        a("v_add_co_u32 v6, vcc, v6, v4")
        a("s_nop 1")
        a("v_addc_co_u32 v7, vcc, 0, v7, vcc")
        a("v_lshlrev_b32 v9, 4, v0")
        a("s_mov_b32 s19, s16")
        m36, sh36 = magic_div(36, 2592)
        a(f"{name}_A:")
        a("s_cmp_ge_u32 s19, 10368")
        a(f"s_cbranch_scc1 {name}_Adone")
        a("s_and_b32 s40, s19, 3")
        a("s_lshr_b32 s41, s19, 2")
        a(f"s_mul_i32 s42, s41, {m36}")
        a(f"s_lshr_b32 s42, s42, {sh36}")
        a("s_mul_i32 s43, s42, 36")
        a("s_sub_u32 s43, s41, s43")
        a("s_lshl_b32 s44, s42, 2")
        a("s_add_u32 s44, s44, s40")
        a("s_mul_i32 s45, s43, 147456")
        a("s_lshl_b32 s46, s44, 5")
        a("s_add_u32 s45, s45, s46")
        a("v_add_co_u32 v10, vcc, s45, v6")
        a("s_nop 1")
        a("v_addc_co_u32 v11, vcc, 0, v7, vcc")
        a("global_load_dwordx4 v[12:15], v[10:11], off")
        a("s_mul_i32 s46, s44, 36864")
        a("s_lshl_b32 s47, s43, 10")
        a("s_add_u32 s46, s46, s47")
        a("s_waitcnt vmcnt(0)")
        a("buffer_store_dwordx4 v[12:15], v9, s[20:23], s46 offen")
        a(f"s_add_u32 s19, s19, {NW}")
        a(f"s_branch {name}_A")
        a(f"{name}_Adone:")
        a("v_mul_u32_u24 v4, 1152, v2")
        a("v_lshl_add_u32 v4, v3, 4, v4")
        a("s_mov_b32 s19, s16")
        a(f"{name}_B:")
        a("s_cmp_ge_u32 s19, 4608")
        a(f"s_cbranch_scc1 {name}_Bdone")
        a("s_and_b32 s40, s19, 3")
        a("s_bfe_u32 s41, s19, 0x20002")
        a("s_lshr_b32 s42, s19, 4")
        a("s_mul_i32 s43, s42, 18432")
        a("s_mul_i32 s44, s41, 288")
        a("s_add_u32 s43, s43, s44")
        a("s_lshl_b32 s44, s40, 6")
        a("s_add_u32 s43, s43, s44")
        a("buffer_load_dwordx4 v[12:15], v4, s[28:31], s43 offen")
        a("s_lshr_b32 s44, s42, 2")
        a("s_mul_i32 s45, s41, 72")
        a("s_add_u32 s44, s44, s45")
        a("s_mul_i32 s44, s44, 18432")
        a("s_lshl_b32 s45, s40, 12")
        a("s_add_u32 s44, s44, s45")
        a("s_and_b32 s45, s42, 3")
        a("s_lshl_b32 s45, s45, 10")
        a("s_add_u32 s44, s44, s45")
        a("s_waitcnt vmcnt(0)")
        a("buffer_store_dwordx4 v[12:15], v9, s[24:27], s44 offen")
        a(f"s_add_u32 s19, s19, {NW}")
        a(f"s_branch {name}_B")
        a(f"{name}_Bdone:")
        a("v_lshrrev_b32 v10, 1, v0")
        a("v_and_b32 v11, 1, v0")
        a("v_mul_u32_u24 v4, 1152, v10")
        a("v_lshl_add_u32 v4, v11, 4, v4")
        a("s_mov_b32 s19, s16")
        a(f"{name}_H:")
        a("s_cmp_ge_u32 s19, 576")
        a(f"s_cbranch_scc1 {name}_Hdone")
        a("s_and_b32 s41, s19, 3")
        a("s_lshr_b32 s42, s19, 2")
        a("s_mul_i32 s43, s42, 36864")
        a("s_mul_i32 s44, s41, 288")
        a("s_add_u32 s43, s43, s44")
        a("s_add_u32 s43, s43, 256")
        a("buffer_load_dwordx4 v[12:15], v4, s[28:31], s43 offen")
        a("s_lshr_b32 s44, s42, 1")
        a("s_mul_i32 s45, s41, 72")
        a("s_add_u32 s44, s44, s45")
        a("s_mul_i32 s44, s44, 18432")
        a("s_add_u32 s44, s44, 16384")
        a("s_and_b32 s45, s42, 1")
        a("s_lshl_b32 s45, s45, 10")
        a("s_add_u32 s44, s44, s45")
        a("s_waitcnt vmcnt(0)")
        a("buffer_store_dwordx4 v[12:15], v9, s[24:27], s44 offen")
        a(f"s_add_u32 s19, s19, {NW}")
        a(f"s_branch {name}_H")
        a(f"{name}_Hdone:")
    a(f"s_cmp_ge_u32 s16, 576")
    a(f"s_cbranch_scc1 {name}_end")
    a("s_lshr_b32 s40, s16, 4")
    a("s_and_b32 s41, s16, 15")
    a("s_mul_i32 s42, s40, 18")
    a("s_and_b32 s43, s40, 1")
    a("s_lshl_b32 s43, s43, 1")
    a("s_add_u32 s42, s42, s43")
    a("s_add_u32 s42, s42, s41")
    a("s_sub_u32 s44, s40, 32")
    a("s_lshl_b32 s44, s44, 3")
    a("s_bfe_u32 s45, s41, 0x10002")
    a("s_lshl_b32 s45, s45, 2")
    a("s_add_u32 s44, s44, s45")
    a("s_lshr_b32 s45, s41, 3")
    a("s_lshl_b32 s45, s45, 1")
    a("s_add_u32 s44, s44, s45")
    a("s_mul_i32 s44, s44, 18")
    a("s_and_b32 s45, s41, 3")
    a("s_add_u32 s44, s44, s45")
    a("s_add_u32 s44, s44, 16")
    a("s_cmp_lt_u32 s40, 32")
    a("s_cselect_b32 s42, s42, s44")
    a("s_mul_i32 s42, s42, 1152")
    a("v_mul_u32_u24 v4, 72, v2")
    a("v_lshl_add_u32 v5, v3, 4, v4")
    a("buffer_load_dwordx4 v[12:15], v5, s[36:39], s42 offen")
    a("buffer_load_dwordx2 v[16:17], v4, s[36:39], s42 offen offset:64")
    a("v_mov_b32 v20, 0x3f803f80")
    a("v_mov_b32 v21, 0")
    a("v_mov_b32 v22, 0")
    a("s_waitcnt vmcnt(0)")
    for i in range(4): a(f"v_dot2_f32_bf16 v21, v{12+i}, v20, v21")
    for i in range(2): a(f"v_dot2_f32_bf16 v22, v{16+i}, v20, v22")
    a("s_nop 2")
    a("v_mul_f32 v22, 0.5, v22")
    a("v_mul_f32 v22, 0.5, v22")
    a("v_add_f32 v21, v21, v22")
    wave_sum(a, 21, 23)
    a(f"v_mul_f32 v21, {hex(0x3ae38e39)}, v21")
    a("v_cvt_pk_bf16_f32 v18, v21, v21")
    a("v_lshlrev_b32 v23, 16, v18")
    a("v_sub_f32 v23, v21, v23")
    a("v_cvt_pk_bf16_f32 v18, v21, v23")
    a("v_mov_b32 v19, 0")
    a("s_mov_b32 s46, 46080")
    a("v_mul_lo_u32 v4, v2, s46")
    a("v_lshl_add_u32 v5, v3, 4, v4")
    a("s_lshl_b32 s47, s16, 6")
    a("buffer_store_dwordx4 v[12:15], v5, s[32:35], s47 offen")
    a("s_lshl_b32 s47, s16, 4")
    a("s_add_u32 s47, s47, 36864")
    a("buffer_store_dwordx4 v[16:19], v4, s[32:35], s47 offen")
    a(f"{name}_end:")
    a("s_endpgm")
    kernel_end(a, name, 32, 32)
    return a.text()
```

```python
from asmlib import *

def gen_k1(name="qkv_kernel"):
    a = Asm()
    kernel_begin(a, name)
    V = Alloc(1, 256, "v")
    acc = [[V(16, 4) for n in range(2)] for t in range(2)]
    acce = V(16, 4)
    Bf = [[V(4, 4) for t in range(2)] for p in range(2)]
    Af = [[V(4, 4) for n in range(3)] for p in range(2)]
    xaddr = [[V() for u in range(4)] for t in range(2)]
    wad = [[V() for sl in range(2)] for n in range(3)]
    vx = [V() for _ in range(2)]
    vw = [V() for _ in range(5)]
    ssum, sssq, csm, cse, ones = V(), V(), V(), V(), V()
    t0, t1, t2, t3, t4, t5 = [V() for _ in range(6)]
    lane, vh = V(), V()
    XS = 16384; WB = 65536; WSZ = 20480; EX = 147456

    a("s_cmp_ge_u32 s2, 192")
    a(f"s_cbranch_scc1 {name}_end")
    prof_start(a)
    a("s_load_dwordx4 s[4:7], s[0:1], 0")
    a("s_load_dwordx2 s[8:9], s[0:1], 72")
    a(f"v_lshrrev_b32 v{t0}, 6, v0")
    a(f"v_and_b32 v{lane}, 63, v0")
    a(f"v_readfirstlane_b32 s24, v{t0}")
    a("s_and_b32 s25, s2, 7")
    a("s_lshr_b32 s26, s2, 3")
    a("s_and_b32 s27, s25, 3")
    a("s_lshl_b32 s27, s27, 2")
    a("s_and_b32 s28, s26, 3")
    a("s_add_u32 s27, s27, s28")
    a("s_lshr_b32 s28, s25, 2")
    a("s_mul_i32 s28, s28, 6")
    a("s_lshr_b32 s29, s26, 2")
    a("s_add_u32 s28, s28, s29")
    a("s_lshr_b32 s29, s28, 2")
    a("s_and_b32 s30, s28, 3")
    a("s_lshr_b32 s31, s24, 1")
    a("s_and_b32 s32, s24, 1")
    a(f"v_lshrrev_b32 v{vh}, 5, v{lane}")
    for par in range(2):
        a(f"v_lshrrev_b32 v{t0}, 4, v{lane}")
        a(f"v_add_u32 v{t0}, {4*par}, v{t0}")
        a(f"v_and_b32 v{t1}, 7, v{lane}")
        a(f"v_xor_b32 v{t0}, v{t0}, v{t1}")
        a(f"v_lshlrev_b32 v{t0}, 4, v{t0}")
        a(f"v_lshrrev_b32 v{t1}, 3, v{lane}")
        a(f"v_mul_u32_u24 v{t1}, 1152, v{t1}")
        a(f"v_add_u32 v{vx[par]}, v{t0}, v{t1}")
    m20, sh20 = magic_div(20, 1280)
    a("s_mul_i32 s33, s24, 320")
    a(f"s_mov_b32 s34, {m20}")
    for i in range(5):
        a(f"v_add_u32 v{t0}, s33, v{lane}")
        if i: a(f"v_add_u32 v{t0}, {64*i}, v{t0}")
        a(f"v_mul_lo_u32 v{t1}, v{t0}, s34")
        a(f"v_lshrrev_b32 v{t1}, {sh20}, v{t1}")
        a(f"v_mul_u32_u24 v{t2}, 20, v{t1}")
        a(f"v_sub_u32 v{t2}, v{t0}, v{t2}")
        a(f"v_lshrrev_b32 v{t3}, 2, v{t2}")
        a(f"v_mul_u32_u24 v{t3}, 72, v{t3}")
        a(f"v_and_b32 v{t4}, 3, v{t2}")
        a(f"v_lshl_add_u32 v{t3}, v{t4}, 4, v{t3}")
        a(f"v_lshrrev_b32 v{t5}, 1, v{t4}")
        a(f"v_lshl_add_u32 v{t3}, v{t5}, 3, v{t3}")
        a(f"v_mul_u32_u24 v{t4}, 72, v{t4}")
        a(f"v_add_u32 v{t4}, 32, v{t4}")
        a(f"v_cmp_gt_u32 vcc, 16, v{t2}")
        a(f"v_mul_u32_u24 v{t1}, 3456, v{t1}")
        a("s_nop 0")
        a(f"v_cndmask_b32 v{t3}, v{t4}, v{t3}, vcc")
        a(f"v_add_u32 v{vw[i]}, v{t1}, v{t3}")
    a("s_waitcnt lgkmcnt(0)")
    srd(a, 12, 4, 0, 2048 * 1152)
    srd(a, 16, 6, 0, 576 * 3456)
    srd(a, 20, 8, 0, 0x900000)
    a("s_lshl_b32 s35, s27, 7")
    a("s_lshl_b32 s36, s24, 5")
    a("s_add_u32 s35, s35, s36")
    a("s_mul_i32 s35, s35, 1152")
    a("s_mul_i32 s36, s29, 1152")
    a("s_mul_i32 s37, s30, 288")
    a("s_add_u32 s36, s36, s37")
    a("s_lshl_b32 s37, s24, 12")
    a("s_mul_i32 s38, s24, 5120")
    a(f"s_add_u32 s38, s38, {WB}")

    def dma_stage(s):
        sl = s % 4
        out = []
        for i in range(4):
            out.append([f"s_add_u32 m0, s37, {sl*XS + i*1024}",
                        f"s_add_u32 s40, s35, {i*9216 + s*128}",
                        f"buffer_load_dwordx4 v{vx[i&1]}, s[12:15], s40 offen lds"])
        for i in range(5):
            out.append([f"s_add_u32 m0, s38, {sl*WSZ + i*1024}",
                        f"s_add_u32 s40, s36, {s*64*3456}",
                        f"buffer_load_dwordx4 v{vw[i]}, s[16:19], s40 offen lds"])
        return out
    for s in range(3):
        for grp in dma_stage(s):
            for x in grp: a(x)

    a(f"v_and_b32 v{t0}, 31, v{lane}")
    a(f"v_lshrrev_b32 v{t1}, 1, v{t0}")
    a(f"v_and_b32 v{t1}, 7, v{t1}")
    for t in range(2):
        a(f"s_xor_b32 s40, s32, {t}")
        a("s_lshl_b32 s41, s31, 1")
        a("s_add_u32 s40, s40, s41")
        a("s_lshl_b32 s40, s40, 12")
        a(f"v_lshl_add_u32 v{t2}, v{t0}, 7, s40")
        for u in range(4):
            a(f"v_add_u32 v{t3}, {2*u}, v{vh}")
            a(f"v_xor_b32 v{t3}, v{t3}, v{t1}")
            a(f"v_lshl_add_u32 v{xaddr[t][u]}, v{t3}, 4, v{t2}")
    a(f"v_bfe_u32 v{t0}, v{lane}, 2, 2")
    a(f"v_lshl_add_u32 v{t0}, v{vh}, 3, v{t0}")
    a(f"v_mul_u32_u24 v{t0}, 320, v{t0}")
    a(f"v_add_u32 v{t0}, {WB}, v{t0}")
    a(f"v_and_b32 v{t1}, 3, v{lane}")
    a(f"v_lshlrev_b32 v{t2}, 4, v{t1}")
    a(f"v_add_u32 v{t2}, v{t2}, v{t0}")
    a(f"v_add_u32 v{wad[2][0]}, 256, v{t2}")
    a(f"v_add_u32 v{wad[2][1]}, {256+2*WSZ}, v{t2}")
    a(f"v_and_b32 v{t2}, 1, v{t1}")
    a(f"v_lshrrev_b32 v{t3}, 1, v{t1}")
    a(f"v_lshl_add_u32 v{t2}, v{t2}, 1, v{t3}")
    a(f"v_lshl_add_u32 v{t0}, v{t2}, 3, v{t0}")
    a(f"v_bfe_u32 v{t2}, v{lane}, 4, 1")
    a(f"v_lshl_add_u32 v{t0}, v{t2}, 5, v{t0}")
    for n in range(2):
        a(f"s_xor_b32 s40, s31, {n}")
        a("s_lshl_b32 s41, s32, 1")
        a("s_add_u32 s40, s40, s41")
        a("s_lshl_b32 s40, s40, 6")
        a(f"v_add_u32 v{wad[n][0]}, s40, v{t0}")
        a(f"v_add_u32 v{wad[n][1]}, {2*WSZ}, v{wad[n][0]}")
    for t in range(2):
        for n in range(2):
            for i in range(16): a(f"v_mov_b32 v{acc[t][n]+i}, 0")
    for i in range(16): a(f"v_mov_b32 v{acce+i}, 0")
    for r in (ssum, sssq, csm, cse): a(f"v_mov_b32 v{r}, 0")
    a(f"v_mov_b32 v{ones}, 0x3f803f80")

    def reads(n):
        s, u, p = n >> 2, n & 3, n & 1
        sl = s % 4
        out = []
        for t in range(2):
            out.append(f"ds_read_b128 {vr(Bf[p][t],4)}, v{xaddr[t][u]} offset:{sl*XS}")
        for nn in range(3):
            for jj in range(2):
                off = (sl & 1) * WSZ + (16*u + 4*jj) * 320
                out.append(f"ds_read_b64_tr_b16 {vr(Af[p][nn]+2*jj,2)}, v{wad[nn][sl>>1]} offset:{off}")
        return out

    prof_mark(a, 0)
    a("s_waitcnt vmcnt(18)")
    a("s_barrier")
    prof_mark(a, 1)
    for x in reads(0): a(x)
    for n in range(36):
        s, u, p = n >> 2, n & 3, n & 1
        fill = []
        if u == 3 and s < 8:
            a(f"s_waitcnt vmcnt({9 if s + 2 <= 8 else 0})")
            a("s_barrier")
            if s + 3 <= 8:
                for grp in dma_stage(s + 3): fill += grp
        rd = reads(n + 1) if n < 35 else []
        dots = []
        for i in range(4):
            dots.append(f"v_dot2c_f32_bf16 v{ssum}, v{Bf[p][0]+i}, v{ones}")
            dots.append(f"v_dot2c_f32_bf16 v{sssq}, v{Bf[p][0]+i}, v{Bf[p][0]+i}")
            dots.append(f"v_dot2c_f32_bf16 v{csm}, v{Af[p][0]+i}, v{ones}")
            dots.append(f"v_dot2c_f32_bf16 v{cse}, v{Af[p][2]+i}, v{ones}")
        mf = []
        for t in range(2):
            for nn in range(2):
                mf.append(f"v_mfma_f32_32x32x16_bf16 {vr(acc[t][nn],16)}, {vr(Af[p][nn],4)}, {vr(Bf[p][t],4)}, {vr(acc[t][nn],16)}")
        mf.append(f"v_mfma_f32_32x32x16_bf16 {vr(acce,16)}, {vr(Af[p][2],4)}, {vr(Bf[p][0],4)}, {vr(acce,16)}")
        a("s_waitcnt lgkmcnt(0)")
        other = rd + dots
        per = -(-len(other) // 5)
        perf = -(-len(fill) // 5) if fill else 0
        if perf % 3: perf += 3 - perf % 3
        for g in range(5):
            a(mf[g])
            for x in other[g*per:(g+1)*per]: a(x)
            for x in fill[g*perf:(g+1)*perf]: a(x)
    prof_mark(a, 2)
    a("s_nop 2")
    for r in (ssum, sssq, csm, cse):
        a(f"v_mov_b32 v{t0}, v{r}")
        a("s_nop 1")
        a(f"v_permlane32_swap_b32 v{t0}, v{r}")
        a(f"v_add_f32 v{r}, v{r}, v{t0}")
    a(f"v_and_b32 v{t0}, 31, v{lane}")
    a("s_lshl_b32 s40, s32, 1")
    a("s_add_u32 s40, s40, s31")
    a("s_lshl_b32 s40, s40, 7")
    a(f"v_lshl_add_u32 v{t1}, v{t0}, 2, s40")
    a(f"ds_write_b32 v{t1}, v{csm} offset:{EX}") if EX < 65536 else None
    a(f"v_add_u32 v{t1}, {EX}, v{t1}")
    a(f"ds_write_b32 v{t1}, v{csm}")
    a(f"v_lshlrev_b32 v{t2}, 2, v{t0}")
    a(f"v_add_u32 v{t2}, {EX+512}, v{t2}")
    a(f"ds_write_b32 v{t2}, v{cse}")
    a("s_lshl_b32 s40, s24, 8")
    a(f"s_add_u32 s40, s40, {EX+1024}")
    a(f"v_lshl_add_u32 v{t3}, v{t0}, 3, s40")
    a(f"v_mov_b32 v{t4}, v{ssum}")
    a(f"v_mov_b32 v{t5}, v{sssq}")
    assert t5 == t4 + 1
    if t4 % 2:
        a(f"ds_write2_b32 v{t3}, v{t4}, v{t5} offset0:0 offset1:1")
    else:
        a(f"ds_write_b64 v{t3}, {vr(t4,2)}")
    a("s_waitcnt lgkmcnt(0)")
    a("s_barrier")
    cs = [V(16, 4) for n in range(2)]
    cx = V(8, 4)
    st = [V(2, 2) for t in range(2)]
    for n in range(2):
        a(f"s_xor_b32 s40, s31, {n}")
        a("s_lshl_b32 s41, s32, 1")
        a("s_add_u32 s40, s40, s41")
        a("s_lshl_b32 s40, s40, 7")
        a(f"s_add_u32 s40, s40, {EX}")
        a(f"v_lshl_add_u32 v{t1}, v{vh}, 4, s40")
        for j in range(4):
            a(f"ds_read_b128 {vr(cs[n]+4*j,4)}, v{t1} offset:{32*j}")
    a(f"v_lshlrev_b32 v{t1}, 4, v{vh}")
    a(f"v_add_u32 v{t1}, {EX+512}, v{t1}")
    for j in range(2):
        a(f"ds_read_b128 {vr(cx+4*j,4)}, v{t1} offset:{32*j}")
    for t in range(2):
        a(f"s_xor_b32 s40, s32, {t}")
        a("s_lshl_b32 s41, s31, 1")
        a("s_add_u32 s40, s40, s41")
        a("s_lshl_b32 s40, s40, 8")
        a(f"s_add_u32 s40, s40, {EX+1024}")
        a(f"v_lshl_add_u32 v{t1}, v{t0}, 3, s40")
        a(f"ds_read_b64 {vr(st[t],2)}, v{t1}")
    a("s_waitcnt lgkmcnt(0)")
    prof_mark(a, 3)
    mean = [V() for _ in range(2)]; rs = [V() for _ in range(2)]
    a("s_mov_b32 s42, 0x3ae38e39")
    a("s_mov_b32 s43, 0x3727c5ac")
    a("s_cmp_eq_u32 s29, 0")
    a("s_cselect_b32 s44, 0x3eae1a93, 1.0")
    for t in range(2):
        a(f"v_mul_f32 v{mean[t]}, s42, v{st[t]}")
        a(f"v_mul_f32 v{t1}, s42, v{st[t]+1}")
        a(f"v_fma_f32 v{t1}, -v{mean[t]}, v{mean[t]}, v{t1}")
        a(f"v_max_f32 v{t1}, 0, v{t1}")
        a(f"v_add_f32 v{t1}, s43, v{t1}")
        a(f"v_rsq_f32 v{rs[t]}, v{t1}")
        a("s_nop 0")
        a(f"v_mul_f32 v{rs[t]}, s44, v{rs[t]}")
    a("s_cmp_lg_u32 s28, 0")
    a(f"s_cbranch_scc1 {name}_nomean")
    a("s_lshl_b32 s40, s27, 2")
    a("s_add_u32 s40, s40, s24")
    a("s_lshl_b32 s40, s40, 7")
    a(f"s_add_u32 s40, s40, {WS['MEANX']}")
    a(f"v_lshlrev_b32 v{t1}, 2, v{t0}")
    a(f"buffer_store_dword v{mean[0]}, v{t1}, s[20:23], s40 offen")
    a(f"{name}_nomean:")
    def norm(dst, accb, csb, nreg, t):
        for i in range(nreg):
            a(f"v_fma_f32 v{accb+i}, -v{mean[t]}, v{csb+i}, v{accb+i}")
        for i in range(nreg):
            a(f"v_mul_f32 v{accb+i}, v{rs[t]}, v{accb+i}")
        for i in range(nreg // 2):
            a(f"v_cvt_pk_bf16_f32 v{dst+i}, v{accb+2*i}, v{accb+2*i+1}")
    vl = V()
    a("s_cmp_eq_u32 s29, 0")
    a(f"s_cselect_b32 s45, {WS['QF1']}, {WS['KV']}")
    a(f"s_mov_b32 s46, {KVH}")
    a(f"s_cselect_b32 s46, 65536, s46")
    a(f"v_lshlrev_b32 v{vl}, 4, v{lane}")
    a(f"v_mul_u32_u24 v{t1}, 40, v{t0}")
    a(f"v_lshl_add_u32 v{t1}, v{vh}, 4, v{t1}")
    a("s_cmp_eq_u32 s29, 2")
    a("s_cselect_b64 vcc, -1, 0")
    a(f"v_cndmask_b32 v{vl}, v{vl}, v{t1}, vcc")
    pk = V(8, 4)
    for t in range(2):
        a(f"s_xor_b32 s40, s32, {t}")
        a("s_lshl_b32 s41, s31, 1")
        a("s_add_u32 s40, s40, s41")
        a("s_lshl_b32 s41, s27, 2")
        a("s_add_u32 s48, s40, s41")
        a("s_lshr_b32 s40, s48, 3")
        a(f"s_mul_i32 s40, s40, {KVC}")
        a("s_and_b32 s41, s48, 7")
        a("s_lshl_b32 s49, s41, 10")
        a("s_add_u32 s49, s49, s40")
        a("s_mul_i32 s50, s41, 1280")
        a("s_add_u32 s50, s50, s40")
        a("s_add_u32 s50, s50, 9216")
        a("s_lshl_b32 s51, s48, 10")
        a("s_cmp_eq_u32 s29, 0")
        a("s_cselect_b32 s47, s51, s49")
        a("s_cmp_eq_u32 s29, 2")
        a("s_cselect_b32 s47, s50, s47")
        a("s_add_u32 s47, s47, s45")
        for n in range(2):
            norm(pk, acc[t][n], cs[n], 16, t)
            a(f"s_xor_b32 s40, s31, {n}")
            a("s_lshl_b32 s41, s32, 1")
            a("s_add_u32 s40, s40, s41")
            a("s_lshl_b32 s41, s30, 2")
            a("s_add_u32 s40, s40, s41")
            a("s_lshl_b32 s40, s40, 1")
            a("s_mul_i32 s40, s40, s46")
            a("s_add_u32 s40, s40, s47")
            a(f"buffer_store_dwordx4 {vr(pk,4)}, v{vl}, s[20:23], s40 offen")
            a("s_add_u32 s40, s40, s46")
            a(f"buffer_store_dwordx4 {vr(pk+4,4)}, v{vl}, s[20:23], s40 offen")
            a("s_nop 1")
        if t == 0:
            norm(pk, acce, cx, 8, 0)
            a("s_cmp_eq_u32 s29, 2")
            a(f"s_cbranch_scc1 {name}_extv")
            a("s_lshl_b32 s51, s48, 7")
            a(f"s_add_u32 s51, s51, {WS['QF2']}")
            a("s_lshr_b32 s40, s48, 3")
            a(f"s_mul_i32 s40, s40, {KVC}")
            a("s_and_b32 s41, s48, 7")
            a("s_lshl_b32 s41, s41, 7")
            a("s_add_u32 s40, s40, s41")
            a(f"s_add_u32 s40, s40, {WS['KV'] + 8192}")
            a("s_cmp_eq_u32 s29, 0")
            a("s_cselect_b32 s51, s51, s40")
            a(f"s_mov_b32 s52, {KVH}")
            a(f"s_cselect_b32 s52, 8192, s52")
            for j in range(2):
                a("s_lshl_b32 s40, s30, 2")
                a(f"s_add_u32 s40, s40, {2*j}")
                a(f"v_add_u32 v{t1}, s40, v{vh}")
                a(f"v_lshlrev_b32 v{t1}, 1, v{t1}")
                a(f"v_mul_lo_u32 v{t1}, v{t1}, s52")
                a(f"v_lshl_add_u32 v{t1}, v{t0}, 2, v{t1}")
                a(f"buffer_store_dword v{pk+2*j}, v{t1}, s[20:23], s51 offen")
                a("s_add_u32 s40, s51, s52")
                a(f"buffer_store_dword v{pk+2*j+1}, v{t1}, s[20:23], s40 offen")
            a(f"s_branch {name}_extdone")
            a(f"{name}_extv:")
            a(f"s_add_u32 s51, s50, {WS['KV'] + 32}")
            a(f"s_mov_b32 s52, {KVH}")
            for j in range(2):
                a("s_lshl_b32 s40, s30, 2")
                a(f"s_add_u32 s40, s40, {2*j}")
                a(f"v_add_u32 v{t1}, s40, v{vh}")
                a(f"v_lshlrev_b32 v{t1}, 1, v{t1}")
                a(f"v_mul_lo_u32 v{t1}, v{t1}, s52")
                a(f"v_mul_u32_u24 v{t2}, 40, v{t0}")
                a(f"v_add_u32 v{t1}, v{t1}, v{t2}")
                for hb in range(2):
                    d = pk + 4 + 2 * hb
                    a(f"v_mov_b32 v{d}, v{pk+2*j+hb}")
                    a(f"v_mov_b32 v{d+1}, 0x00003f80")
                    if hb: a("s_add_u32 s40, s51, s52")
                    else: a("s_mov_b32 s40, s51")
                    a(f"buffer_store_dwordx2 {vr(d,2)}, v{t1}, s[20:23], s40 offen")
            a(f"{name}_extdone:")
    prof_end(a, 1, 8)
    a(f"{name}_end:")
    a("s_endpgm")
    kernel_end(a, name, V.hi, (V.hi + 3) // 4 * 4)
    return a.text(), EX + 2048
```

```python
class Asm:
    def __init__(self):
        self.l = []
    def __call__(self, s=""):
        for x in s.split("\n"):
            x = x.strip()
            if not x: continue
            if x.endswith(":") or x.startswith("."): self.l.append(x)
            else: self.l.append("  " + x)
    def text(self): return "\n".join(self.l) + "\n"

class Alloc:
    def __init__(self, start, limit, kind):
        self.n = start; self.limit = limit; self.kind = kind; self.hi = start
    def __call__(self, cnt=1, align=1):
        self.n = (self.n + align - 1) // align * align
        b = self.n; self.n += cnt
        assert self.n <= self.limit, f"out of {self.kind} registers ({self.n})"
        self.hi = max(self.hi, self.n)
        return b

def vr(b, n=1, k="v"):
    return f"{k}{b}" if n == 1 else f"{k}[{b}:{b+n-1}]"
def sr(b, n=1): return vr(b, n, "s")
def ar(b, n=1): return vr(b, n, "a")

def srd(a, dst, ptr, off, size, tmp=None):
    if off:
        a(f"s_add_u32 s{dst}, s{ptr}, {off}")
        a(f"s_addc_u32 s{dst+1}, s{ptr+1}, 0")
    else:
        a(f"s_mov_b32 s{dst}, s{ptr}")
        a(f"s_mov_b32 s{dst+1}, s{ptr+1}")
    a(f"s_mov_b32 s{dst+2}, {size}")
    a(f"s_mov_b32 s{dst+3}, 0x00020000")

def kernel_begin(a, name):
    a(".text")
    a(f".globl {name}")
    a(".p2align 8")
    a(f".type {name},@function")
    a(f"{name}:")

def kernel_end(a, name, nvgpr, accum, nsgpr=100):
    a(f""".section .rodata,"a"
.p2align 6
.amdhsa_kernel {name}
.amdhsa_next_free_vgpr {nvgpr}
.amdhsa_next_free_sgpr {nsgpr}
.amdhsa_accum_offset {accum}
.amdhsa_group_segment_fixed_size 0
.amdhsa_kernarg_size 80
.amdhsa_user_sgpr_count 2
.amdhsa_user_sgpr_kernarg_segment_ptr 1
.amdhsa_system_sgpr_workgroup_id_x 1
.amdhsa_float_denorm_mode_32 3
.amdhsa_ieee_mode 0
.end_amdhsa_kernel""")

def magic_div(d, maxn, bits=16):
    for sh in range(bits, 32):
        m = -(-(1 << sh) // d)
        if (maxn - 1) * m >= (1 << 32): break
        if all(((n * m) >> sh) == n // d for n in range(maxn)): return m, sh
    raise ValueError("no magic")

WS = dict(
    QF1=0x0000000, QF2=0x0200000, KV=0x0300000, MEANX=0x0800000, STAT=0x0810000, CSUM=0x0820000, WOP=0x0900000,
    OF=0x0A00000, XF=0x0D00000, HR=0x1000000, PSS=0x1300000, WGU=0x1400000,
    WD=0x2000000, HF=0x2600000, PART=0x3800000)
KVH = 155648
KVC = 19456
ARG = dict(x=0, wqkv=8, wo=16, bx=24, wg=32, wu=40, wd=48, out=56, dbg=64, ws=72)

import os
PROF = bool(os.environ.get("PROF"))
PROF_OFF = 0x5000000
def prof_start(a):
    if not PROF: return
    a("s_memtime s[80:81]")
    a("s_memrealtime s[82:83]")
def prof_mark(a, k):
    if not PROF or os.environ.get("PROF") == "2": return
    a(f"s_memtime s[{64+2*k}:{65+2*k}]")
def prof_end(a, kidx, wsreg=8, nw=8):
    if not PROF: return
    a("s_waitcnt vmcnt(0) lgkmcnt(0)")
    a("s_memtime s[84:85]")
    a("s_memrealtime s[86:87]")
    a("s_waitcnt lgkmcnt(0)")
    a(f"s_add_u32 s88, s{wsreg}, {PROF_OFF + kidx * 0x100000}")
    a(f"s_addc_u32 s89, s{wsreg+1}, 0")
    a("s_mov_b32 s90, 0x100000")
    a("s_mov_b32 s91, 0x00020000")
    a("v_lshrrev_b32 v1, 6, v0")
    a("s_lshl_b32 s92, s2, 4")
    a("v_add_u32 v1, s92, v1")
    a("v_lshlrev_b32 v1, 6, v1")
    for i in range(8):
        a(f"v_mov_b32 v{2+i}, s{80+i}")
    for i in range(8):
        a(f"v_mov_b32 v{10+i}, s{64+i}")
    a("v_and_b32 v18, 63, v0")
    a("v_cmp_eq_u32 vcc, 0, v18")
    a("s_nop 1")
    a("s_and_saveexec_b64 s[92:93], vcc")
    for i in range(4):
        a(f"buffer_store_dwordx4 v[{2+4*i}:{5+4*i}], v1, s[88:91], 0 offen offset:{16*i}")
    a("s_mov_b64 exec, s[92:93]")


class VmOps:
    def __init__(self): self.l = []; self.n = 0
    def add(self, tag, cls="all"): self.l.append((tag, cls))
    def wait(self, tag):
        res = []
        for c in ("lo", "hi"):
            ops = [t for t, k in self.l if k == "all" or c == "lo"]
            idx = [i for i, t in enumerate(ops) if t == tag]
            if idx: res.append(len(ops) - 1 - max(idx))
        return min(min(res), 63)
    def label(self, base):
        self.n += 1
        return f"{base}_sk{self.n}"

def slice36(a, dst, w="s24"):
    a(f"s_mul_i32 {dst}, {w}, 5120")
    a(f"s_lshl_b32 s99, {w}, 12")
    a("s_add_u32 s99, s99, 4096")
    a(f"s_cmp_lt_u32 {w}, 4")
    a(f"s_cselect_b32 {dst}, {dst}, s99")
```

```python
from asmlib import *
from k0 import wave_sum
import os
K1X = os.environ.get('K1X', '')
K1SC = os.environ.get('K1SC', '')

def gen_jobC(a, name, V):
    v2, v3, v4, v5 = V[0], V[1], V[2], V[3]
    D = V[4]
    E = V[5]
    a("s_load_dwordx2 s[14:15], s[0:1], 16")
    a("s_load_dwordx2 s[8:9], s[0:1], 72")
    a(f"v_lshrrev_b32 v{v2}, 6, v0")
    a(f"v_and_b32 v{v5}, 63, v0")
    a(f"v_readfirstlane_b32 s16, v{v2}")
    a("s_sub_u32 s17, s2, 27")
    a("s_lshl_b32 s17, s17, 3")
    a("s_add_u32 s16, s16, s17")
    a(f"v_lshrrev_b32 v{v2}, 2, v{v5}")
    a(f"v_and_b32 v{v3}, 3, v{v5}")
    a("s_waitcnt lgkmcnt(0)")
    srd(a, 32, 8, WS["WOP"], 16 * 46080)
    srd(a, 36, 14, 0, 576 * 1152)
    a(f"{name}_C:")
    a("s_cmp_ge_u32 s16, 576")
    a(f"s_cbranch_scc1 {name}_end")
    a("s_lshr_b32 s40, s16, 4")
    a("s_and_b32 s41, s16, 15")
    a("s_mul_i32 s42, s40, 18")
    a("s_and_b32 s43, s40, 1")
    a("s_lshl_b32 s43, s43, 1")
    a("s_add_u32 s42, s42, s43")
    a("s_add_u32 s42, s42, s41")
    a("s_sub_u32 s44, s40, 32")
    a("s_lshl_b32 s44, s44, 3")
    a("s_bfe_u32 s45, s41, 0x10002")
    a("s_lshl_b32 s45, s45, 2")
    a("s_add_u32 s44, s44, s45")
    a("s_lshr_b32 s45, s41, 3")
    a("s_lshl_b32 s45, s45, 1")
    a("s_add_u32 s44, s44, s45")
    a("s_mul_i32 s44, s44, 18")
    a("s_and_b32 s45, s41, 3")
    a("s_add_u32 s44, s44, s45")
    a("s_add_u32 s44, s44, 16")
    a("s_cmp_lt_u32 s40, 32")
    a("s_cselect_b32 s42, s42, s44")
    a("s_mul_i32 s42, s42, 1152")
    a(f"v_mul_u32_u24 v{v4}, 72, v{v2}")
    a(f"v_lshl_add_u32 v{E}, v{v3}, 4, v{v4}")
    a(f"buffer_load_dwordx4 {vr(D,4)}, v{E}, s[36:39], s42 offen")
    a(f"buffer_load_dwordx2 {vr(D+4,2)}, v{v4}, s[36:39], s42 offen offset:64")
    a(f"v_mov_b32 v{E}, 0x3f803f80")
    a(f"v_mov_b32 v{E+1}, 0")
    a(f"v_mov_b32 v{E+2}, 0")
    a("s_waitcnt vmcnt(0)")
    for i in range(4): a(f"v_dot2_f32_bf16 v{E+1}, v{D+i}, v{E}, v{E+1}")
    for i in range(2): a(f"v_dot2_f32_bf16 v{E+2}, v{D+4+i}, v{E}, v{E+2}")
    a("s_nop 2")
    a(f"v_mul_f32 v{E+2}, 0.5, v{E+2}")
    a(f"v_mul_f32 v{E+2}, 0.5, v{E+2}")
    a(f"v_add_f32 v{E+1}, v{E+1}, v{E+2}")
    wave_sum(a, E+1, E+3)
    a(f"v_mul_f32 v{E+1}, 0x3ae38e39, v{E+1}")
    a(f"v_cvt_pk_bf16_f32 v{D+6}, v{E+1}, v{E+1}")
    a(f"v_lshlrev_b32 v{E+3}, 16, v{D+6}")
    a(f"v_sub_f32 v{E+3}, v{E+1}, v{E+3}")
    a(f"v_cvt_pk_bf16_f32 v{D+6}, v{E+1}, v{E+3}")
    a(f"v_mov_b32 v{D+7}, 0")
    a("s_mov_b32 s46, 46080")
    a(f"v_mul_lo_u32 v{v4}, v{v2}, s46")
    a(f"v_lshl_add_u32 v{E}, v{v3}, 4, v{v4}")
    a("s_lshl_b32 s47, s16, 6")
    a(f"buffer_store_dwordx4 {vr(D,4)}, v{E}, s[32:35], s47 offen")
    a("s_lshl_b32 s47, s16, 4")
    a("s_add_u32 s47, s47, 36864")
    a(f"buffer_store_dwordx4 {vr(D+4,4)}, v{v4}, s[32:35], s47 offen")
    a("s_add_u32 s16, s16, 296")
    a("s_waitcnt vmcnt(0)")
    a(f"s_branch {name}_C")

def gen_spare(a, name, acc, acce, cs, T):
    t0, t1, t2, t3, t4, t5, lane = T
    X = acc[0]
    assert acc[1] == acc[0] + 16
    W = acce
    a("s_load_dwordx4 s[4:7], s[0:1], 0")
    a("s_load_dwordx2 s[8:9], s[0:1], 72")
    a("s_load_dwordx2 s[10:11], s[0:1], 64")
    a(f"v_lshrrev_b32 v{t0}, 6, v0")
    a(f"v_and_b32 v{lane}, 63, v0")
    a(f"v_readfirstlane_b32 s24, v{t0}")
    a("s_waitcnt lgkmcnt(0)")
    srd(a, 12, 4, 0, 2048 * 1152)
    srd(a, 16, 6, 0, 576 * 3456)
    srd(a, 52, 8, WS["STAT"], 2048 * 8)
    srd(a, 56, 10, 0, 256)
    srd(a, 60, 8, WS["CSUM"], 1728 * 4)
    a("s_lshl_b32 s25, s2, 3")
    a("s_add_u32 s25, s25, s24")
    a("s_lshl_b32 s25, s25, 2")
    a("s_mul_i32 s26, s25, 1152")
    a(f"v_lshrrev_b32 v{t0}, 4, v{lane}")
    a(f"v_and_b32 v{t1}, 15, v{lane}")
    a(f"v_mul_u32_u24 v{t2}, 1152, v{t0}")
    a(f"v_lshl_add_u32 v{t2}, v{t1}, 4, v{t2}")
    for i in range(4):
        a(f"buffer_load_dwordx4 {vr(X+4*i,4)}, v{t2}, s[12:15], s26 offen offset:{256*i}")
    a(f"v_cmp_gt_u32 vcc, 8, v{t1}")
    a(f"v_add_u32 v{t3}, 1024, v{t2}")
    a(f"v_mov_b32 v{t4}, 0x7ff00000")
    a(f"v_cndmask_b32 v{t3}, v{t4}, v{t3}, vcc")
    a(f"buffer_load_dwordx4 {vr(X+16,4)}, v{t3}, s[12:15], s26 offen")
    C = cs[0]
    a("s_cmp_ge_u32 s2, 27")
    a(f"s_cbranch_scc1 {name}_nocsld")
    a("s_mul_i32 s27, s24, 72*3456")
    a("s_lshl_b32 s28, s2, 7")
    a("s_add_u32 s27, s27, s28")
    a(f"v_lshrrev_b32 v{t3}, 3, v{lane}")
    a(f"v_mul_u32_u24 v{t3}, 3456, v{t3}")
    a(f"v_and_b32 v{t4}, 7, v{lane}")
    a(f"v_lshl_add_u32 v{t3}, v{t4}, 4, v{t3}")
    for i in range(9):
        a(f"buffer_load_dwordx4 {vr(C+4*i,4)}, v{t3}, s[16:19], s27 offen")
        if i < 8: a("s_add_u32 s27, s27, 8*3456")
    a(f"{name}_nocsld:")
    S1, S2, ONE = acce, acce + 1, acce + 2
    a(f"v_mov_b32 v{S1}, 0"); a(f"v_mov_b32 v{S2}, 0"); a(f"v_mov_b32 v{ONE}, 0x3f803f80")
    a("s_cmp_ge_u32 s2, 27")
    a(f"s_cbranch_scc1 {name}_w0")
    a("s_waitcnt vmcnt(9)")
    a(f"s_branch {name}_w1")
    a(f"{name}_w0:")
    a("s_waitcnt vmcnt(0)")
    a(f"{name}_w1:")
    for i in range(20):
        a(f"v_dot2c_f32_bf16 v{S1}, v{X+i}, v{ONE}")
        a(f"v_dot2c_f32_bf16 v{S2}, v{X+i}, v{X+i}")
    a("s_nop 2")
    for r in (S1, S2):
        for mod in ("quad_perm:[1,0,3,2]", "quad_perm:[2,3,0,1]", "row_half_mirror", "row_mirror"):
            a("s_nop 1")
            a(f"v_add_f32_dpp v{r}, v{r}, v{r} {mod} row_mask:0xf bank_mask:0xf")
    a(f"v_mul_f32 v{S1}, 0x3ae38e39, v{S1}")
    a(f"v_mul_f32 v{S2}, 0x3ae38e39, v{S2}")
    a(f"v_fma_f32 v{S2}, -v{S1}, v{S1}, v{S2}")
    a(f"v_max_f32 v{S2}, 0, v{S2}")
    a(f"v_add_f32 v{S2}, 0x3727c5ac, v{S2}")
    a(f"v_rsq_f32 v{S2}, v{S2}")
    a(f"v_lshlrev_b32 v{t2}, 3, v{t0}")
    a("s_lshl_b32 s26, s25, 3")
    a(f"buffer_store_dwordx2 {vr(S1,2)}, v{t2}, s[52:55], s26 offen sc1")
    a("s_cmp_ge_u32 s2, 27")
    a(f"s_cbranch_scc1 {name}_signal")
    A8 = acc[0]
    for k in range(8): a(f"v_mov_b32 v{A8+k}, 0")
    a("s_waitcnt vmcnt(1)")
    for i in range(9):
        for r in range(4):
            a(f"v_lshlrev_b32 v{t2}, 16, v{C+4*i+r}")
            a(f"v_and_b32 v{t3}, 0xffff0000, v{C+4*i+r}")
            a(f"v_add_f32 v{A8+2*r}, v{A8+2*r}, v{t2}")
            a(f"v_add_f32 v{A8+2*r+1}, v{A8+2*r+1}, v{t3}")
    for k in range(8):
        a("s_nop 1")
        a(f"v_add_f32_dpp v{A8+k}, v{A8+k}, v{A8+k} row_ror:8 row_mask:0xf bank_mask:0xf")
    for swap in ("v_permlane16_swap_b32", "v_permlane32_swap_b32"):
        for k in range(8):
            a(f"v_mov_b32 v{t2}, v{A8+k}")
            a("s_nop 1")
            a(f"{swap} v{t2}, v{A8+k}")
            a(f"v_add_f32 v{A8+k}, v{A8+k}, v{t2}")
    a(f"v_and_b32 v{t2}, 7, v{lane}")
    a(f"v_lshlrev_b32 v{t2}, 5, v{t2}")
    a("s_lshl_b32 s27, s24, 8")
    a(f"v_add_u32 v{t2}, s27, v{t2}")
    a(f"ds_write_b128 v{t2}, {vr(A8,4)}")
    a(f"ds_write_b128 v{t2}, {vr(A8+4,4)} offset:16")
    a("s_waitcnt lgkmcnt(0)")
    a("s_barrier")
    a(f"v_lshlrev_b32 v{t2}, 2, v{lane}")
    for k in range(8): a(f"ds_read_b32 v{X+8+k}, v{t2} offset:{256*k}")
    a("s_waitcnt lgkmcnt(0)")
    for k in range(1, 8): a(f"v_add_f32 v{X+8}, v{X+8}, v{X+8+k}")
    a("s_lshl_b32 s27, s2, 8")
    a(f"buffer_store_dword v{X+8}, v{t2}, s[60:63], s27 offen sc1")
    a(f"{name}_signal:")
    a("s_waitcnt vmcnt(0)")
    a("s_barrier")
    a("s_cmp_lg_u32 s24, 0")
    a(f"s_cbranch_scc1 {name}_jobc")
    a(f"v_mov_b32 v{t2}, 1")
    a(f"v_mov_b32 v{t3}, 0")
    a("s_mov_b64 exec, 1")
    a(f"buffer_atomic_add v{t2}, v{t3}, s[56:59], 0 offen sc1")
    a("s_mov_b64 exec, -1")
    a(f"{name}_jobc:")
    a("s_cmp_lt_u32 s2, 27")
    a(f"s_cbranch_scc1 {name}_end")
    gen_jobC(a, name, [t3, t4, t5, lane, acc[0], acc[1]])

def gen_k1(name="qkv_kernel"):
    a = Asm()
    kernel_begin(a, name)
    V = Alloc(1, 256, "v")
    t0, t1, t2 = V(), V(), V()
    acc = [V(16, 4) for n in range(2)]
    acce = V(16, 4)
    Bf = [V(4, 4) for p in range(2)]
    Af = [[V(4, 4) for n in range(3)] for p in range(2)]
    cs = [V(16, 4) for n in range(2)]
    cx = V(8, 4)
    pk = V(8, 4)
    st = V(2, 2)
    xaddr = [V() for u in range(4)]
    wad = [[V() for sl in range(2)] for n in range(3)]
    vx = [V() for _ in range(2)]
    vw = [V() for _ in range(3)]
    R0, R1, CSM = V(4), V(4), V(4)
    r0, r1, csm, ones = R0, R1, CSM, V()
    t3, t4, t5 = V(), V(), V()
    lane, vh, tok, mean, rs, vl = [V() for _ in range(6)]
    XS = 16384; WB = 65536; WSZ = 20480; EX = 147456

    a("s_cmp_ge_u32 s2, 256")
    a(f"s_cbranch_scc1 {name}_end")
    a("s_cmp_lt_u32 s2, 64")
    a(f"s_cbranch_scc1 {name}_spare")
    a("s_sub_u32 s2, s2, 64")
    prof_start(a)
    code_prefetch(a, name, t0, f"v{V()}", 8)
    a("s_load_dwordx4 s[4:7], s[0:1], 0")
    a("s_load_dwordx4 s[8:11], s[0:1], 64") if False else None
    a("s_load_dwordx2 s[8:9], s[0:1], 72")
    a("s_load_dwordx2 s[10:11], s[0:1], 64")
    a(f"v_lshrrev_b32 v{t0}, 6, v0")
    a(f"v_and_b32 v{lane}, 63, v0")
    a(f"v_readfirstlane_b32 s24, v{t0}")
    a("s_and_b32 s25, s2, 7")
    a("s_lshr_b32 s26, s2, 3")
    a("s_and_b32 s27, s25, 3")
    a("s_lshl_b32 s27, s27, 2")
    a("s_and_b32 s28, s26, 3")
    a("s_add_u32 s27, s27, s28")
    a("s_lshr_b32 s28, s25, 2")
    a("s_mul_i32 s28, s28, 6")
    a("s_lshr_b32 s29, s26, 2")
    a("s_add_u32 s28, s28, s29")
    a("s_lshr_b32 s29, s28, 2")
    a("s_and_b32 s30, s28, 3")
    a("s_and_b32 s31, s24, 3")
    a("s_lshr_b32 s32, s24, 2")
    for par in range(2):
        a(f"v_lshrrev_b32 v{t0}, 4, v{lane}")
        if par: a(f"v_add_u32 v{t0}, 4, v{t0}")
        a(f"v_and_b32 v{t1}, 7, v{lane}")
        a(f"v_xor_b32 v{t0}, v{t0}, v{t1}")
        a(f"v_lshlrev_b32 v{t0}, 4, v{t0}")
        a(f"v_lshrrev_b32 v{t1}, 3, v{lane}")
        a(f"v_mul_u32_u24 v{t1}, 1152, v{t1}")
        a(f"v_add_u32 v{vx[par]}, v{t0}, v{t1}")
    a("s_lshl_b32 s35, s27, 7")
    a("s_lshl_b32 s36, s24, 4")
    a("s_add_u32 s35, s35, s36")
    a("s_mul_i32 s35, s35, 1152")
    a("s_lshl_b32 s37, s24, 11")
    a("s_mul_i32 s36, s29, 1152")
    a("s_mul_i32 s33, s30, 288")
    a("s_add_u32 s36, s36, s33")
    a("s_mul_i32 s55, s24, 3")
    a("s_lshl_b32 s33, s24, 1")
    a("s_add_u32 s33, s33, 4")
    a("s_cmp_lt_u32 s24, 4")
    a("s_cselect_b32 s55, s55, s33")
    a("s_lshl_b32 s38, s55, 10")
    a(f"s_add_u32 s38, s38, {WB}")
    a("s_waitcnt lgkmcnt(0)")
    srd(a, 12, 4, 0, 2048 * 1152)
    srd(a, 16, 6, 0, 576 * 3456)
    ops = []
    def dma_x(s):
        sl = s % 4
        return [[f"s_add_u32 m0, s37, {sl*XS + i*1024}", f"s_add_u32 s40, s35, {i*9216 + s*128}",
                 f"buffer_load_dwordx4 v{vx[i]}, s[12:15], s40 offen lds"] for i in range(2)]
    def dma_w(s, nh=None):
        sl = s % 4
        out = []
        for i in range(3):
            g = [f"s_add_u32 m0, s38, {sl*WSZ + i*1024}", f"s_add_u32 s40, s36, {s*64*3456}",
                 f"buffer_load_dwordx4 v{vw[i]}, s[16:19], s40 offen lds"]
            if i == 2:
                if nh == 1: continue
                if nh is None:
                    lab[0] += 1
                    g = ["s_cmp_ge_u32 s24, 4", f"s_cbranch_scc1 {name}_pw{lab[0]}"] + g + [f"{name}_pw{lab[0]}:"]
            out.append(g)
        return out
    lab = [0]
    def emit(groups, tag):
        for g in groups:
            for x in g: a(x)
            ops.append(tag)
    def wait_for(tag):
        last = max(i for i, t in enumerate(ops) if t == tag)
        return len(ops) - 1 - last
    emit(dma_x(0), "s0")
    m20, sh20 = magic_div(20, 1408)
    a("s_lshl_b32 s33, s55, 6")
    a(f"s_mov_b32 s34, {m20}")
    for i in range(3):
        a(f"v_add_u32 v{t0}, s33, v{lane}")
        if i: a(f"v_add_u32 v{t0}, {64*i}, v{t0}")
        a(f"v_mul_lo_u32 v{t1}, v{t0}, s34")
        a(f"v_lshrrev_b32 v{t1}, {sh20}, v{t1}")
        a(f"v_mul_u32_u24 v{t2}, 20, v{t1}")
        a(f"v_sub_u32 v{t2}, v{t0}, v{t2}")
        a(f"v_lshrrev_b32 v{t3}, 2, v{t2}")
        a(f"v_mul_u32_u24 v{t3}, 72, v{t3}")
        a(f"v_and_b32 v{t4}, 3, v{t2}")
        a(f"v_lshl_add_u32 v{t3}, v{t4}, 4, v{t3}")
        a(f"v_lshrrev_b32 v{t5}, 1, v{t4}")
        a(f"v_lshl_add_u32 v{t3}, v{t5}, 3, v{t3}")
        a(f"v_mul_u32_u24 v{t4}, 72, v{t4}")
        a(f"v_add_u32 v{t4}, 32, v{t4}")
        a(f"v_cmp_gt_u32 vcc, 16, v{t2}")
        a(f"v_mul_u32_u24 v{t1}, 3456, v{t1}")
        a("s_nop 0")
        a(f"v_cndmask_b32 v{t3}, v{t4}, v{t3}, vcc")
        a(f"v_add_u32 v{vw[i]}, v{t1}, v{t3}")
    emit(dma_w(0), "s0")
    emit(dma_x(1) + dma_w(1), "s1")
    ops_lo = list(ops)
    ops_hi = [t for i, t in enumerate(ops) if i not in (4, 9)]
    srd(a, 20, 8, 0, 0x900000)
    srd(a, 52, 8, WS["STAT"], 2048 * 8)
    srd(a, 56, 10, 0, 256)
    srd(a, 60, 8, WS["CSUM"], 1728 * 4)
    a(f"v_lshrrev_b32 v{vh}, 5, v{lane}")
    a(f"v_and_b32 v{tok}, 31, v{lane}")
    a(f"v_lshrrev_b32 v{t1}, 1, v{tok}")
    a(f"v_and_b32 v{t1}, 7, v{t1}")
    a("s_lshl_b32 s40, s31, 12")
    a(f"v_lshl_add_u32 v{t2}, v{tok}, 7, s40")
    for u in range(4):
        a(f"v_add_u32 v{t3}, {2*u}, v{vh}")
        a(f"v_xor_b32 v{t3}, v{t3}, v{t1}")
        a(f"v_lshl_add_u32 v{xaddr[u]}, v{t3}, 4, v{t2}")
    a(f"v_bfe_u32 v{t0}, v{lane}, 2, 2")
    a(f"v_lshl_add_u32 v{t0}, v{vh}, 3, v{t0}")
    a(f"v_mul_u32_u24 v{t0}, 320, v{t0}")
    a(f"v_add_u32 v{t0}, {WB}, v{t0}")
    a(f"v_and_b32 v{t1}, 3, v{lane}")
    a(f"v_lshlrev_b32 v{t2}, 4, v{t1}")
    a(f"v_add_u32 v{t2}, v{t2}, v{t0}")
    a(f"v_add_u32 v{wad[2][0]}, 256, v{t2}")
    a(f"v_add_u32 v{wad[2][1]}, {256+2*WSZ}, v{t2}")
    a(f"v_and_b32 v{t2}, 1, v{t1}")
    a(f"v_lshrrev_b32 v{t3}, 1, v{t1}")
    a(f"v_lshl_add_u32 v{t2}, v{t2}, 1, v{t3}")
    a(f"v_lshl_add_u32 v{t0}, v{t2}, 3, v{t0}")
    a(f"v_bfe_u32 v{t2}, v{lane}, 4, 1")
    a(f"v_lshl_add_u32 v{t0}, v{t2}, 5, v{t0}")
    a("s_and_b32 s39, s31, 1")
    for n in range(2):
        a(f"s_xor_b32 s40, s39, {n}")
        a("s_lshl_b32 s41, s32, 1")
        a("s_add_u32 s40, s40, s41")
        a("s_lshl_b32 s40, s40, 6")
        a(f"v_add_u32 v{wad[n][0]}, s40, v{t0}")
        a(f"v_add_u32 v{wad[n][1]}, {2*WSZ}, v{wad[n][0]}")
    for n in range(2):
        for i in range(16): a(f"v_mov_b32 v{acc[n]+i}, 0")
    for i in range(16): a(f"v_mov_b32 v{acce+i}, 0")
    for r in (R0, R1, CSM):
        for i in range(4): a(f"v_mov_b32 v{r+i}, 0")
    a(f"v_mov_b32 v{ones}, 0x3f803f80")
    ops[:] = ops_hi
    a(f"s_waitcnt vmcnt({wait_for('s0')})")
    a("s_barrier")
    prof_mark(a, 0)
    a("s_cmp_eq_u32 s32, 0")
    a(f"s_cbranch_scc0 {name}_nh1")
    ops_save = list(ops)

    for nh in range(2):
        ops[:] = list(ops_lo if nh == 0 else ops_hi)
        if nh: a(f"{name}_nh1:")
        nA = 3 if nh == 0 else 2
        def reads(n):
            s, u, p = n >> 2, n & 3, n & 1
            sl = s % 4
            out = [f"ds_read_b128 {vr(Bf[p],4)}, v{xaddr[u]} offset:{sl*XS}"]
            for nn in range(nA):
                for jj in range(2):
                    off = (sl & 1) * WSZ + (16*u + 4*jj) * 320
                    out.append(f"ds_read_b64_tr_b16 {vr(Af[p][nn]+2*jj,2)}, v{wad[nn][sl>>1]} offset:{off}")
            return out
        for x in reads(0): a(x)
        nrd = 1 + 2 * nA
        for n in range(36):
            s, u, p = n >> 2, n & 3, n & 1
            fill = []
            if u == 2 and s < 8:
                a(f"s_waitcnt vmcnt({wait_for(f's{s+1}')})")
                a("s_barrier")
                if s + 3 <= 8: fill = [(g, f"s{s+3}") for g in dma_x(s + 3) + dma_w(s + 3, nh)]
            if n == 0: fill = [(g, "s2") for g in dma_x(2) + dma_w(2, nh)]
            if n == 30:
                prof_mark(a, 1)
                a(f"v_mov_b32 v{t1}, 0")
                a("s_mov_b32 s43, 0x200000")
                a(f"{name}_poll{nh}:")
                a(f"buffer_load_dword v{t0}, v{t1}, s[56:59], 0 offen sc1")
                a("s_waitcnt vmcnt(0)")
                a(f"v_readfirstlane_b32 s48, v{t0}")
                a("s_sub_u32 s43, s43, 1")
                a("s_cmp_eq_u32 s43, 0")
                a(f"s_cbranch_scc1 {name}_go{nh}")
                a("s_cmp_ge_u32 s48, 64")
                a(f"s_cbranch_scc1 {name}_go{nh}")
                a("s_sleep 1")
                a(f"s_branch {name}_poll{nh}")
                a(f"{name}_go{nh}:")
                prof_mark(a, 2)
                a("s_mul_i32 s40, s29, 576")
                a("s_mul_i32 s41, s30, 144")
                a("s_add_u32 s42, s40, s41")
                for nn in range(2):
                    a(f"s_xor_b32 s40, s39, {nn}")
                    a("s_lshl_b32 s41, s32, 1")
                    a("s_add_u32 s40, s40, s41")
                    a("s_mul_i32 s40, s40, 36")
                    a("s_add_u32 s40, s40, s42")
                    a("s_lshl_b32 s40, s40, 2")
                    a(f"v_lshlrev_b32 v{t1}, 5, v{vh}")
                    for j, off in enumerate((0, 16, 80, 96)):
                        a(f"buffer_load_dwordx4 {vr(cs[nn]+4*j,4)}, v{t1}, s[60:63], s40 offen offset:{off} sc1")
                if nh == 0:
                    a("s_lshl_b32 s40, s42, 2")
                    a(f"v_mul_u32_u24 v{t1}, 144, v{vh}")
                    for j in range(2):
                        a(f"buffer_load_dwordx4 {vr(cx+4*j,4)}, v{t1}, s[60:63], s40 offen offset:{64 + 288*j} sc1")
                a("s_lshl_b32 s40, s27, 2")
                a("s_add_u32 s40, s40, s31")
                a("s_lshl_b32 s40, s40, 8")
                a(f"v_lshlrev_b32 v{t1}, 3, v{tok}")
                a(f"buffer_load_dwordx2 {vr(st,2)}, v{t1}, s[52:55], s40 offen sc1")
            rd = reads(n + 1) if n < 35 else []
            a("s_waitcnt lgkmcnt(0)")
            mf = [f"v_mfma_f32_32x32x16_bf16 {vr(acc[nn],16)}, {vr(Af[p][nn],4)}, {vr(Bf[p],4)}, {vr(acc[nn],16)}" for nn in range(2)]
            if nh == 0:
                mf.append(f"v_mfma_f32_32x32x16_bf16 {vr(acce,16)}, {vr(Af[p][2],4)}, {vr(Bf[p],4)}, {vr(acce,16)}")
            dots = []
            if 'nodots' in K1X: dots = []
            if 'nods' in K1X: rd = []
            if 'nob' in K1X: rd = rd[1:]
            if 'noa' in K1X: rd = rd[:1]
            if 'nodma' in K1X:
                for g, tag in fill: ops.append(tag)
                fill = []
            a(mf[0])
            for x in rd: a(x)
            per = -(-max(len(dots), 1) // len(mf))
            a(mf[1])
            for x in dots[:per]: a(x)
            if nh == 0: a(mf[2])
            for x in dots[per:]: a(x)
            for g, tag in fill: emit([g], tag)
        if nh == 0: a(f"s_branch {name}_epi")
    a(f"{name}_epi:")
    prof_mark(a, 3)
    a("s_lshl_b32 s41, s27, 2")
    a("s_add_u32 s48, s31, s41")
    a("s_lshr_b32 s40, s48, 3")
    a(f"s_mul_i32 s53, s40, {KVC}")
    a("s_and_b32 s54, s48, 7")
    a("s_lshl_b32 s49, s54, 10")
    a("s_add_u32 s49, s49, s53")
    a("s_mul_i32 s50, s54, 1280")
    a("s_add_u32 s50, s50, s53")
    a("s_add_u32 s50, s50, 9216")
    a("s_lshl_b32 s51, s48, 10")
    a("s_cmp_eq_u32 s29, 0")
    a(f"s_cselect_b32 s45, {WS['QF1']}, {WS['KV']}")
    a(f"s_mov_b32 s46, {KVH}")
    a(f"s_cselect_b32 s46, 65536, s46")
    a("s_cselect_b32 s47, s51, s49")
    a("s_cselect_b32 s44, 0x3eae1a93, 1.0")
    a("s_cmp_eq_u32 s29, 2")
    a("s_cselect_b32 s47, s50, s47")
    a("s_cselect_b64 vcc, -1, 0")
    a("s_add_u32 s47, s47, s45")
    a(f"v_lshlrev_b32 v{vl}, 4, v{lane}")
    a(f"v_mul_u32_u24 v{t1}, 40, v{tok}")
    a(f"v_lshl_add_u32 v{t1}, v{vh}, 4, v{t1}")
    a(f"v_cndmask_b32 v{vl}, v{vl}, v{t1}, vcc")
    a("s_waitcnt vmcnt(0)")
    a(f"v_mov_b32 v{mean}, v{st}")
    a(f"v_mul_f32 v{rs}, s44, v{st+1}")
    def norm(dst, accb, csb, nreg):
        for i in range(nreg):
            a(f"v_fma_f32 v{accb+i}, -v{mean}, v{csb+i}, v{accb+i}")
        for i in range(nreg):
            a(f"v_mul_f32 v{accb+i}, v{rs}, v{accb+i}")
        for i in range(nreg // 2):
            a(f"v_cvt_pk_bf16_f32 v{dst+i}, v{accb+2*i}, v{accb+2*i+1}")
    for n in range(2):
        dst = pk if n == 0 else cs[0]
        norm(dst, acc[n], cs[n], 16)
        a(f"s_xor_b32 s40, s39, {n}")
        a("s_lshl_b32 s41, s32, 1")
        a("s_add_u32 s40, s40, s41")
        a("s_lshl_b32 s41, s30, 2")
        a("s_add_u32 s40, s40, s41")
        a("s_lshl_b32 s40, s40, 1")
        a("s_mul_i32 s40, s40, s46")
        a("s_add_u32 s40, s40, s47")
        a(f"buffer_store_dwordx4 {vr(dst,4)}, v{vl}, s[20:23], s40 offen{K1SC}")
        a("s_add_u32 s40, s40, s46")
        a(f"buffer_store_dwordx4 {vr(dst+4,4)}, v{vl}, s[20:23], s40 offen{K1SC}")
    a("s_cmp_eq_u32 s32, 0")
    a(f"s_cbranch_scc0 {name}_fin")
    a(f"{name}_ext:")
    ep = cs[1]
    norm(ep, acce, cx, 8)
    a("s_cmp_eq_u32 s29, 2")
    a(f"s_cbranch_scc1 {name}_extv")
    a("s_lshl_b32 s51, s48, 7")
    a(f"s_add_u32 s51, s51, {WS['QF2']}")
    a("s_lshl_b32 s41, s54, 7")
    a("s_add_u32 s40, s53, s41")
    a(f"s_add_u32 s40, s40, {WS['KV'] + 8192}")
    a("s_cmp_eq_u32 s29, 0")
    a("s_cselect_b32 s51, s51, s40")
    a(f"s_mov_b32 s52, {KVH}")
    a(f"s_cselect_b32 s52, 8192, s52")
    for j in range(2):
        a("s_lshl_b32 s40, s30, 2")
        a(f"s_add_u32 s40, s40, {2*j}")
        a(f"v_add_u32 v{t1}, s40, v{vh}")
        a(f"v_lshlrev_b32 v{t1}, 1, v{t1}")
        a(f"v_mul_lo_u32 v{t1}, v{t1}, s52")
        a(f"v_lshl_add_u32 v{t1}, v{tok}, 2, v{t1}")
        a(f"buffer_store_dword v{ep+2*j}, v{t1}, s[20:23], s51 offen{K1SC}")
        a("s_add_u32 s40, s51, s52")
        a(f"buffer_store_dword v{ep+2*j+1}, v{t1}, s[20:23], s40 offen{K1SC}")
    a(f"s_branch {name}_fin")
    a(f"{name}_extv:")
    a(f"s_add_u32 s51, s50, {WS['KV'] + 32}")
    a(f"s_mov_b32 s52, {KVH}")
    for j in range(2):
        a("s_lshl_b32 s40, s30, 2")
        a(f"s_add_u32 s40, s40, {2*j}")
        a(f"v_add_u32 v{t1}, s40, v{vh}")
        a(f"v_lshlrev_b32 v{t1}, 1, v{t1}")
        a(f"v_mul_lo_u32 v{t1}, v{t1}, s52")
        a(f"v_mul_u32_u24 v{t2}, 40, v{tok}")
        a(f"v_add_u32 v{t1}, v{t1}, v{t2}")
        for hb in range(2):
            d = ep + 4 + 4*j + 2 * hb
            a(f"v_mov_b32 v{d}, v{ep+2*j+hb}")
            a(f"v_mov_b32 v{d+1}, 0x00003f80")
            if hb: a("s_add_u32 s40, s51, s52")
            else: a("s_mov_b32 s40, s51")
            a(f"buffer_store_dwordx2 {vr(d,2)}, v{t1}, s[20:23], s40 offen{K1SC}")
    a(f"{name}_fin:")
    prof_end(a, 1, 8)
    a("s_endpgm")
    a(f"{name}_spare:")
    gen_spare(a, name, acc, acce, cs, [t0, t1, t2, t3, t4, t5, lane])
    a(f"{name}_end:")
    a("s_endpgm")
    kernel_end(a, name, V.hi, (V.hi + 3) // 4 * 4)
    return a.text(), EX + 2048
```

```python
class Asm:
    def __init__(self):
        self.l = []
    def __call__(self, s=""):
        for x in s.split("\n"):
            x = x.strip()
            if not x: continue
            if x.endswith(":") or x.startswith("."): self.l.append(x)
            else: self.l.append("  " + x)
    def text(self): return "\n".join(self.l) + "\n"

class Alloc:
    def __init__(self, start, limit, kind):
        self.n = start; self.limit = limit; self.kind = kind; self.hi = start
    def __call__(self, cnt=1, align=1):
        self.n = (self.n + align - 1) // align * align
        b = self.n; self.n += cnt
        assert self.n <= self.limit, f"out of {self.kind} registers ({self.n})"
        self.hi = max(self.hi, self.n)
        return b

def vr(b, n=1, k="v"):
    return f"{k}{b}" if n == 1 else f"{k}[{b}:{b+n-1}]"
def sr(b, n=1): return vr(b, n, "s")
def ar(b, n=1): return vr(b, n, "a")

def srd(a, dst, ptr, off, size, tmp=None):
    if off:
        a(f"s_add_u32 s{dst}, s{ptr}, {off}")
        a(f"s_addc_u32 s{dst+1}, s{ptr+1}, 0")
    else:
        a(f"s_mov_b32 s{dst}, s{ptr}")
        a(f"s_mov_b32 s{dst+1}, s{ptr+1}")
    a(f"s_mov_b32 s{dst+2}, {size}")
    a(f"s_mov_b32 s{dst+3}, 0x00020000")

def kernel_begin(a, name):
    a(".text")
    a(f".globl {name}")
    a(".p2align 8")
    a(f".type {name},@function")
    a(f"{name}:")

def kernel_end(a, name, nvgpr, accum, nsgpr=100):
    a(f""".section .rodata,"a"
.p2align 6
.amdhsa_kernel {name}
.amdhsa_next_free_vgpr {nvgpr}
.amdhsa_next_free_sgpr {nsgpr}
.amdhsa_accum_offset {accum}
.amdhsa_group_segment_fixed_size 0
.amdhsa_kernarg_size 80
.amdhsa_user_sgpr_count 2
.amdhsa_user_sgpr_kernarg_segment_ptr 1
.amdhsa_system_sgpr_workgroup_id_x 1
.amdhsa_float_denorm_mode_32 3
.amdhsa_ieee_mode 0
.end_amdhsa_kernel""")

def magic_div(d, maxn, bits=16):
    for sh in range(bits, 32):
        m = -(-(1 << sh) // d)
        if (maxn - 1) * m >= (1 << 32): break
        if all(((n * m) >> sh) == n // d for n in range(maxn)): return m, sh
    raise ValueError("no magic")

WS = dict(
    QF1=0x0000000, QF2=0x0200000, KV=0x0300000, MEANX=0x0800000, STAT=0x0810000, CSUM=0x0820000, WOP=0x0900000,
    OF=0x0A00000, XF=0x0D00000, HR=0x1000000, PSS=0x1300000, WGU=0x1400000,
    WD=0x2000000, HF=0x2600000, PART=0x3800000)
KVH = 155648
KVC = 19456
ARG = dict(x=0, wqkv=8, wo=16, bx=24, wg=32, wu=40, wd=48, out=56, dbg=64, ws=72)

import os
PROF = bool(os.environ.get("PROF"))
PROF_OFF = 0x5000000
def prof_start(a):
    if not PROF: return
    a("s_memtime s[80:81]")
    a("s_memrealtime s[82:83]")
def prof_mark(a, k):
    if not PROF or os.environ.get("PROF") == "2": return
    if os.environ.get("PROF") == "3": a(f"s_memrealtime s[{64+2*k}:{65+2*k}]")
    else: a(f"s_memtime s[{64+2*k}:{65+2*k}]")
def prof_end(a, kidx, wsreg=8, nw=8):
    if not PROF: return
    a("s_waitcnt vmcnt(0) lgkmcnt(0)")
    a("s_memtime s[84:85]")
    a("s_memrealtime s[86:87]")
    a("s_waitcnt lgkmcnt(0)")
    a(f"s_add_u32 s88, s{wsreg}, {PROF_OFF + kidx * 0x100000}")
    a(f"s_addc_u32 s89, s{wsreg+1}, 0")
    a("s_mov_b32 s90, 0x100000")
    a("s_mov_b32 s91, 0x00020000")
    a("v_lshrrev_b32 v1, 6, v0")
    a("s_lshl_b32 s92, s2, 4")
    a("v_add_u32 v1, s92, v1")
    a("v_lshlrev_b32 v1, 6, v1")
    for i in range(8):
        a(f"v_mov_b32 v{2+i}, s{80+i}")
    for i in range(8):
        a(f"v_mov_b32 v{10+i}, s{64+i}")
    a("v_and_b32 v18, 63, v0")
    a("v_cmp_eq_u32 vcc, 0, v18")
    a("s_nop 1")
    a("s_and_saveexec_b64 s[92:93], vcc")
    for i in range(4):
        a(f"buffer_store_dwordx4 v[{2+4*i}:{5+4*i}], v1, s[88:91], 0 offen offset:{16*i}")
    a("s_mov_b64 exec, s[92:93]")


class VmOps:
    def __init__(self): self.l = []; self.n = 0
    def add(self, tag, cls="all"): self.l.append((tag, cls))
    def wait(self, tag):
        res = []
        for c in ("lo", "hi"):
            ops = [t for t, k in self.l if k == "all" or c == "lo"]
            idx = [i for i, t in enumerate(ops) if t == tag]
            if idx: res.append(len(ops) - 1 - max(idx))
        return min(min(res), 63)
    def label(self, base):
        self.n += 1
        return f"{base}_sk{self.n}"

def slice36(a, dst, w="s24"):
    a(f"s_mul_i32 {dst}, {w}, 5120")
    a(f"s_lshl_b32 s99, {w}, 12")
    a("s_add_u32 s99, s99, 4096")
    a(f"s_cmp_lt_u32 {w}, 4")
    a(f"s_cselect_b32 {dst}, {dst}, s99")


def code_prefetch(a, name, vtmp, vdst, nwaves, sreg=94):
    if os.environ.get("NOPF"): return
    per = 8 // nwaves
    a(f"s_getpc_b64 s[{sreg}:{sreg+1}]")
    a(f"{name}_pc:")
    a(f"s_sub_u32 s{sreg}, s{sreg}, {name}_pc-code_begin")
    a(f"s_subb_u32 s{sreg+1}, s{sreg+1}, 0")
    for i in range(per):
        a(f"v_lshlrev_b32 v{vtmp}, 7, v0")
        if i: a(f"v_add_u32 v{vtmp}, {i * nwaves * 8192}, v{vtmp}")
        a(f"v_min_u32 v{vtmp}, code_end-code_begin-4, v{vtmp}")
        a(f"global_load_dword {vdst}, v{vtmp}, s[{sreg}:{sreg+1}]")
```

```python
import sys, os
sys.path.insert(0, os.path.dirname(__file__))
sys.path.insert(0, os.path.join(os.path.dirname(__file__), ".."))
from asmlib import *
import hazard
import k0, k1

def build(which=None):
    parts = []
    launches = []
    def add(name, text, grid, block, lds):
        parts.append(text); launches.append((name, grid, block, lds))
    t, lds = k1.gen_k1(); add("qkv_kernel", t, 256, 512, lds)
    for modname, fn, kname in EXTRA:
        mod = __import__(modname)
        t, grid, block, lds = getattr(mod, fn)()
        add(kname, t, grid, block, lds)
    hdr = open(os.path.join(os.path.dirname(__file__), "header.txt")).read()
    for n, g, b, l in launches:
        hdr += f"; @launch kernel={n} grid=({g},1,1) block=({b},1,1) lds={l}\n"
    body = '.amdgcn_target "amdgcn-amd-amdhsa--gfx950"\n.text\ncode_begin:\n' + "".join(parts[:-1])
    last = parts[-1]
    k = last.rindex('.section .rodata')
    body += last[:k] + "code_end:\n" + last[k:]
    n = hazard.check(body)
    print("hazards:", n)
    return hdr + body

EXTRA = []
if __name__ == "__main__":
    import importlib
    spec = os.path.join(os.path.dirname(__file__), "extra.txt")
    if os.path.exists(spec):
        for line in open(spec):
            if line.strip(): EXTRA.append(tuple(line.split()))
    out = sys.argv[1]
    open(out, "w").write(build())
```

```python
from asmlib import *
from k0 import wave_sum
import os
K1X = os.environ.get('K1X', '')
K1SC = os.environ.get('K1SC', '')

def jobC_row(a, u, dst):
    a(f"s_lshr_b32 s80, {u}, 4")
    a(f"s_and_b32 s81, {u}, 15")
    a("s_mul_i32 s82, s80, 18")
    a("s_and_b32 s83, s80, 1")
    a("s_lshl_b32 s83, s83, 1")
    a("s_add_u32 s82, s82, s83")
    a("s_add_u32 s82, s82, s81")
    a("s_sub_u32 s84, s80, 32")
    a("s_lshl_b32 s84, s84, 3")
    a("s_bfe_u32 s85, s81, 0x10002")
    a("s_lshl_b32 s85, s85, 2")
    a("s_add_u32 s84, s84, s85")
    a("s_lshr_b32 s85, s81, 3")
    a("s_lshl_b32 s85, s85, 1")
    a("s_add_u32 s84, s84, s85")
    a("s_mul_i32 s84, s84, 18")
    a("s_and_b32 s85, s81, 3")
    a("s_add_u32 s84, s84, s85")
    a("s_add_u32 s84, s84, 16")
    a("s_cmp_lt_u32 s80, 32")
    a("s_cselect_b32 s82, s82, s84")
    a(f"s_mul_i32 {dst}, s82, 1152")

def gen_jobC_load(a, name, E, T):
    t0, t1, t2, t3, t4, t5, lane = T
    a("s_load_dwordx2 s[14:15], s[0:1], 16")
    a("s_sub_u32 s86, s2, 27")
    a("s_lshl_b32 s86, s86, 3")
    a("s_add_u32 s86, s86, s24")
    a("s_add_u32 s87, s86, 296")
    jobC_row(a, "s86", "s88")
    jobC_row(a, "s87", "s89")
    a("s_cmp_lt_u32 s87, 576")
    a("s_cselect_b32 s89, s89, 0x7f000000")
    a(f"v_lshrrev_b32 v{t3}, 2, v{lane}")
    a(f"v_and_b32 v{t4}, 3, v{lane}")
    a(f"v_mul_u32_u24 v{t3}, 72, v{t3}")
    a(f"v_lshl_add_u32 v{t4}, v{t4}, 4, v{t3}")
    a("s_waitcnt lgkmcnt(0)")
    srd(a, 90, 14, 0, 576 * 1152) if False else None
    a("s_mov_b32 s92, s14"); a("s_mov_b32 s93, s15"); a(f"s_mov_b32 s94, {576*1152}"); a("s_mov_b32 s95, 0x00020000")
    for r, row in enumerate(("s88", "s89")):
        a(f"buffer_load_dwordx4 {vr(E+8*r,4)}, v{t4}, s[92:95], {row} offen")
        a(f"buffer_load_dwordx2 {vr(E+8*r+4,2)}, v{t3}, s[92:95], {row} offen offset:64")

def gen_jobC_store(a, name, E, F, T):
    t0, t1, t2, t3, t4, t5, lane = T
    srd(a, 32, 8, WS["WOP"], 16 * 46080)
    a(f"v_lshrrev_b32 v{t3}, 2, v{lane}")
    a(f"v_and_b32 v{t4}, 3, v{lane}")
    a("s_mov_b32 s46, 46080")
    a(f"v_mul_lo_u32 v{t3}, v{t3}, s46")
    a(f"v_lshl_add_u32 v{t4}, v{t4}, 4, v{t3}")
    for r, u in enumerate(("s86", "s87")):
        D = E + 8*r
        if r:
            a("s_cmp_ge_u32 s87, 576")
            a(f"s_cbranch_scc1 {name}_end")
        a(f"v_mov_b32 v{F}, 0x3f803f80")
        a(f"v_mov_b32 v{F+1}, 0")
        a(f"v_mov_b32 v{F+2}, 0")
        for i in range(4): a(f"v_dot2_f32_bf16 v{F+1}, v{D+i}, v{F}, v{F+1}")
        for i in range(2): a(f"v_dot2_f32_bf16 v{F+2}, v{D+4+i}, v{F}, v{F+2}")
        a("s_nop 2")
        a(f"v_mul_f32 v{F+2}, 0.5, v{F+2}")
        a(f"v_mul_f32 v{F+2}, 0.5, v{F+2}")
        a(f"v_add_f32 v{F+1}, v{F+1}, v{F+2}")
        wave_sum(a, F+1, F+3)
        a(f"v_mul_f32 v{F+1}, 0x3ae38e39, v{F+1}")
        a(f"v_cvt_pk_bf16_f32 v{D+6}, v{F+1}, v{F+1}")
        a(f"v_lshlrev_b32 v{F+3}, 16, v{D+6}")
        a(f"v_sub_f32 v{F+3}, v{F+1}, v{F+3}")
        a(f"v_cvt_pk_bf16_f32 v{D+6}, v{F+1}, v{F+3}")
        a(f"v_mov_b32 v{D+7}, 0")
        a(f"s_lshl_b32 s47, {u}, 6")
        a(f"buffer_store_dwordx4 {vr(D,4)}, v{t4}, s[32:35], s47 offen")
        a(f"s_lshl_b32 s47, {u}, 4")
        a("s_add_u32 s47, s47, 36864")
        a(f"buffer_store_dwordx4 {vr(D+4,4)}, v{t3}, s[32:35], s47 offen")

def gen_jobB_load(a, name, D, T):
    t0, t1, t2, t3, t4, t5, lane = T
    BIG = 0x7f000000
    a("s_load_dwordx4 s[44:47], s[0:1], 32")
    a("s_load_dwordx2 s[48:49], s[0:1], 48")
    a("s_lshl_b32 s40, s2, 3")
    a("s_add_u32 s40, s40, s24")
    a(f"v_lshrrev_b32 v{t0}, 2, v{lane}")
    a(f"v_and_b32 v{t1}, 3, v{lane}")
    a(f"v_mul_u32_u24 v{t2}, 1152, v{t0}")
    a(f"v_lshl_add_u32 v{t2}, v{t1}, 4, v{t2}")
    a(f"v_lshrrev_b32 v{t3}, 1, v{lane}")
    a(f"v_and_b32 v{t4}, 1, v{lane}")
    a(f"v_mul_u32_u24 v{t3}, 1152, v{t3}")
    a(f"v_lshl_add_u32 v{t3}, v{t4}, 4, v{t3}")
    a(f"v_lshlrev_b32 v{t5}, 4, v{lane}")
    a("s_and_b32 s50, s40, 3")
    a("s_bfe_u32 s51, s40, 0x20002")
    a("s_lshr_b32 s64, s40, 4")
    a("s_mul_i32 s65, s64, 18432")
    a("s_mul_i32 s66, s51, 288")
    a("s_add_u32 s65, s65, s66")
    a("s_lshl_b32 s66, s50, 6")
    a("s_add_u32 s65, s65, s66")
    a("s_lshr_b32 s66, s64, 2")
    a("s_mul_i32 s67, s51, 72")
    a("s_add_u32 s66, s66, s67")
    a("s_mul_i32 s66, s66, 18432")
    a("s_lshl_b32 s67, s50, 12")
    a("s_add_u32 s66, s66, s67")
    a("s_and_b32 s67, s64, 3")
    a("s_lshl_b32 s67, s67, 10")
    a("s_add_u32 s66, s66, s67")
    a("s_lshr_b32 s51, s40, 2")
    a("s_mul_i32 s68, s51, 36864")
    a("s_mul_i32 s69, s50, 288")
    a("s_add_u32 s68, s68, s69")
    a("s_add_u32 s68, s68, 256")
    a("s_lshr_b32 s69, s51, 1")
    a("s_mul_i32 s70, s50, 72")
    a("s_add_u32 s69, s69, s70")
    a("s_mul_i32 s69, s69, 18432")
    a("s_add_u32 s69, s69, 16384")
    a("s_and_b32 s70, s51, 1")
    a("s_lshl_b32 s70, s70, 10")
    a("s_add_u32 s69, s69, s70")
    a(f"s_add_u32 s70, s68, {128*36864}")
    a(f"s_add_u32 s71, s69, {64*18432}")
    a("s_cmp_lt_u32 s40, 64")
    a(f"s_cselect_b32 s70, s70, {BIG}")
    a(f"s_cselect_b32 s71, s71, {BIG}")
    a("s_waitcnt lgkmcnt(0)")
    srd(a, 76, 48, 0, 4608 * 1152)
    for t in range(9):
        a(f"s_add_u32 s50, s65, {32*18432*t}")
        a(f"buffer_load_dwordx4 {vr(D+4*t,4)}, v{t2}, s[76:79], s50 offen")
    a(f"buffer_load_dwordx4 {vr(D+36,4)}, v{t3}, s[76:79], s68 offen")
    a(f"buffer_load_dwordx4 {vr(D+40,4)}, v{t3}, s[76:79], s70 offen")
    a("s_cmp_ge_u32 s40, 288")
    a(f"s_cbranch_scc1 {name}_nota")
    a("s_lshr_b32 s41, s40, 2")
    a("s_cmp_ge_u32 s41, 36")
    a("s_cselect_b32 s42, 1, 0")
    a("s_mul_i32 s43, s42, 36")
    a("s_sub_u32 s43, s41, s43")
    a("s_add_u32 s42, s42, 70")
    a("s_lshl_b32 s42, s42, 2")
    a("s_and_b32 s50, s40, 3")
    a("s_add_u32 s42, s42, s50")
    a("s_mul_i32 s50, s43, 147456")
    a("s_lshl_b32 s51, s42, 5")
    a("s_add_u32 s72, s50, s51")
    a("s_mul_i32 s50, s42, 36864")
    a("s_lshl_b32 s51, s43, 10")
    a("s_add_u32 s73, s50, s51")
    a("s_mov_b32 s50, 9216")
    a(f"v_mul_lo_u32 v{t3}, v{t0}, s50")
    a(f"v_and_b32 v{t4}, 1, v{t1}")
    a(f"v_lshl_add_u32 v{t3}, v{t4}, 4, v{t3}")
    a(f"v_add_u32 v{t3}, s72, v{t3}")
    a(f"v_cmp_gt_u32 vcc, 2, v{t1}")
    a(f"v_mov_b32 v{D+48}, s46")
    a(f"v_mov_b32 v{t4}, s44")
    a(f"v_cndmask_b32 v{D+48}, v{D+48}, v{t4}, vcc")
    a(f"v_mov_b32 v{D+49}, s47")
    a(f"v_mov_b32 v{t4}, s45")
    a(f"v_cndmask_b32 v{D+49}, v{D+49}, v{t4}, vcc")
    a(f"v_add_co_u32 v{D+48}, vcc, v{D+48}, v{t3}")
    a("s_nop 1")
    a(f"v_addc_co_u32 v{D+49}, vcc, 0, v{D+49}, vcc")
    a(f"global_load_dwordx4 {vr(D+44,4)}, {vr(D+48,2)}, off")
    a(f"{name}_nota:")

def gen_jobB_store(a, name, D, T):
    t0, t1, t2, t3, t4, t5, lane = T
    srd(a, 52, 8, WS["WGU"], 288 * 36864)
    srd(a, 56, 8, WS["WD"], 4 * 72 * 18432)
    a(f"v_lshlrev_b32 v{t5}, 4, v{lane}")
    for t in range(9):
        a(f"s_add_u32 s50, s66, {8*18432*t}")
        a(f"buffer_store_dwordx4 {vr(D+4*t,4)}, v{t5}, s[56:59], s50 offen sc1")
    a(f"buffer_store_dwordx4 {vr(D+36,4)}, v{t5}, s[56:59], s69 offen sc1")
    a(f"buffer_store_dwordx4 {vr(D+40,4)}, v{t5}, s[56:59], s71 offen sc1")
    a("s_cmp_ge_u32 s40, 288")
    a(f"s_cbranch_scc1 {name}_nota2")
    a(f"buffer_store_dwordx4 {vr(D+44,4)}, v{t5}, s[52:55], s73 offen sc1")
    a(f"{name}_nota2:")

def gen_spare(a, name, acc, acce, cs, T, V):
    t0, t1, t2, t3, t4, t5, lane = T
    X = acc[0]
    assert acc[1] == acc[0] + 16
    W = acce
    a("s_load_dwordx4 s[4:7], s[0:1], 0")
    a("s_load_dwordx2 s[8:9], s[0:1], 72")
    a("s_load_dwordx2 s[10:11], s[0:1], 64")
    a(f"v_lshrrev_b32 v{t0}, 6, v0")
    a(f"v_and_b32 v{lane}, 63, v0")
    a(f"v_readfirstlane_b32 s24, v{t0}")
    a("s_waitcnt lgkmcnt(0)")
    srd(a, 12, 4, 0, 2048 * 1152)
    srd(a, 16, 6, 0, 576 * 3456)
    srd(a, 52, 8, WS["STAT"], 2048 * 8)
    srd(a, 56, 10, 0, 256)
    srd(a, 60, 8, WS["CSUM"], 1728 * 4)
    a("s_lshl_b32 s25, s2, 3")
    a("s_add_u32 s25, s25, s24")
    a("s_lshl_b32 s25, s25, 2")
    a("s_mul_i32 s26, s25, 1152")
    a(f"v_lshrrev_b32 v{t0}, 4, v{lane}")
    a(f"v_and_b32 v{t1}, 15, v{lane}")
    a(f"v_mul_u32_u24 v{t2}, 1152, v{t0}")
    a(f"v_lshl_add_u32 v{t2}, v{t1}, 4, v{t2}")
    for i in range(4):
        a(f"buffer_load_dwordx4 {vr(X+4*i,4)}, v{t2}, s[12:15], s26 offen offset:{256*i}")
    a(f"v_cmp_gt_u32 vcc, 8, v{t1}")
    a(f"v_add_u32 v{t3}, 1024, v{t2}")
    a(f"v_mov_b32 v{t4}, 0x7ff00000")
    a(f"v_cndmask_b32 v{t3}, v{t4}, v{t3}, vcc")
    a(f"buffer_load_dwordx4 {vr(X+16,4)}, v{t3}, s[12:15], s26 offen")
    EC = V(16, 4); FC = V(4, 4)
    C = cs[0]
    a("s_cmp_ge_u32 s2, 27")
    a(f"s_cbranch_scc1 {name}_nocsld")
    a("s_mul_i32 s27, s24, 72*3456")
    a("s_lshl_b32 s28, s2, 7")
    a("s_add_u32 s27, s27, s28")
    a(f"v_lshrrev_b32 v{t3}, 3, v{lane}")
    a(f"v_mul_u32_u24 v{t3}, 3456, v{t3}")
    a(f"v_and_b32 v{t4}, 7, v{lane}")
    a(f"v_lshl_add_u32 v{t3}, v{t4}, 4, v{t3}")
    for i in range(9):
        a(f"buffer_load_dwordx4 {vr(C+4*i,4)}, v{t3}, s[16:19], s27 offen")
        if i < 8: a("s_add_u32 s27, s27, 8*3456")
    a(f"s_branch {name}_ldrest")
    a(f"{name}_nocsld:")
    gen_jobC_load(a, name, EC, T)
    a(f"{name}_ldrest:")
    a(f"v_lshrrev_b32 v{t0}, 4, v{lane}")
    S1, S2, ONE = acce, acce + 1, acce + 2
    a(f"v_mov_b32 v{S1}, 0"); a(f"v_mov_b32 v{S2}, 0"); a(f"v_mov_b32 v{ONE}, 0x3f803f80")
    a("s_waitcnt vmcnt(0)")
    for i in range(20):
        a(f"v_dot2c_f32_bf16 v{S1}, v{X+i}, v{ONE}")
        a(f"v_dot2c_f32_bf16 v{S2}, v{X+i}, v{X+i}")
    a("s_nop 2")
    for r in (S1, S2):
        for mod in ("quad_perm:[1,0,3,2]", "quad_perm:[2,3,0,1]", "row_half_mirror", "row_mirror"):
            a("s_nop 1")
            a(f"v_add_f32_dpp v{r}, v{r}, v{r} {mod} row_mask:0xf bank_mask:0xf")
    a(f"v_mul_f32 v{S1}, 0x3ae38e39, v{S1}")
    a(f"v_mul_f32 v{S2}, 0x3ae38e39, v{S2}")
    a(f"v_fma_f32 v{S2}, -v{S1}, v{S1}, v{S2}")
    a(f"v_max_f32 v{S2}, 0, v{S2}")
    a(f"v_add_f32 v{S2}, 0x3727c5ac, v{S2}")
    a(f"v_rsq_f32 v{S2}, v{S2}")
    a(f"v_lshlrev_b32 v{t2}, 3, v{t0}")
    a("s_lshl_b32 s26, s25, 3")
    a(f"buffer_store_dwordx2 {vr(S1,2)}, v{t2}, s[52:55], s26 offen sc1")
    a("s_cmp_ge_u32 s2, 27")
    a(f"s_cbranch_scc1 {name}_signal")
    A8 = acc[0]
    for k in range(8): a(f"v_mov_b32 v{A8+k}, 0")
    for i in range(9):
        for r in range(4):
            a(f"v_lshlrev_b32 v{t2}, 16, v{C+4*i+r}")
            a(f"v_and_b32 v{t3}, 0xffff0000, v{C+4*i+r}")
            a(f"v_add_f32 v{A8+2*r}, v{A8+2*r}, v{t2}")
            a(f"v_add_f32 v{A8+2*r+1}, v{A8+2*r+1}, v{t3}")
    for k in range(8):
        a("s_nop 1")
        a(f"v_add_f32_dpp v{A8+k}, v{A8+k}, v{A8+k} row_ror:8 row_mask:0xf bank_mask:0xf")
    for swap in ("v_permlane16_swap_b32", "v_permlane32_swap_b32"):
        for k in range(8):
            a(f"v_mov_b32 v{t2}, v{A8+k}")
            a("s_nop 1")
            a(f"{swap} v{t2}, v{A8+k}")
            a(f"v_add_f32 v{A8+k}, v{A8+k}, v{t2}")
    a(f"v_and_b32 v{t2}, 7, v{lane}")
    a(f"v_lshlrev_b32 v{t2}, 5, v{t2}")
    a("s_lshl_b32 s27, s24, 8")
    a(f"v_add_u32 v{t2}, s27, v{t2}")
    a(f"ds_write_b128 v{t2}, {vr(A8,4)}")
    a(f"ds_write_b128 v{t2}, {vr(A8+4,4)} offset:16")
    a("s_waitcnt lgkmcnt(0)")
    a("s_barrier")
    a(f"v_lshlrev_b32 v{t2}, 2, v{lane}")
    for k in range(8): a(f"ds_read_b32 v{X+8+k}, v{t2} offset:{256*k}")
    a("s_waitcnt lgkmcnt(0)")
    for k in range(1, 8): a(f"v_add_f32 v{X+8}, v{X+8}, v{X+8+k}")
    a("s_lshl_b32 s27, s2, 8")
    a(f"buffer_store_dword v{X+8}, v{t2}, s[60:63], s27 offen sc1")
    a(f"{name}_signal:")
    a("s_waitcnt vmcnt(0)")
    a("s_barrier")
    a("s_cmp_lg_u32 s24, 0")
    a(f"s_cbranch_scc1 {name}_jobc")
    a(f"v_mov_b32 v{t2}, 1")
    a(f"v_mov_b32 v{t3}, 0")
    a("s_mov_b64 exec, 1")
    a(f"buffer_atomic_add v{t2}, v{t3}, s[56:59], 0 offen sc1")
    a("s_mov_b64 exec, -1")
    a(f"{name}_jobc:")
    a("s_cmp_lt_u32 s2, 27")
    a(f"s_cbranch_scc1 {name}_end")
    gen_jobC_store(a, name, EC, FC, T)

def gen_k1(name="qkv_kernel"):
    a = Asm()
    kernel_begin(a, name)
    V = Alloc(1, 256, "v")
    t0, t1, t2 = V(), V(), V()
    acc = [V(16, 4) for n in range(2)]
    acce = V(16, 4)
    Bf = [V(4, 4) for p in range(2)]
    Af = [[V(4, 4) for n in range(3)] for p in range(2)]
    cs = [V(16, 4) for n in range(2)]
    cx = V(8, 4)
    pk = V(8, 4)
    st = V(2, 2)
    xaddr = [V() for u in range(4)]
    wad = [[V() for sl in range(2)] for n in range(3)]
    vx = [V() for _ in range(2)]
    vw = [V() for _ in range(3)]
    R0, R1, CSM = V(4), V(4), V(4)
    r0, r1, csm, ones = R0, R1, CSM, V()
    t3, t4, t5 = V(), V(), V()
    lane, vh, tok, mean, rs, vl = [V() for _ in range(6)]
    XS = 16384; WB = 65536; WSZ = 20480; EX = 147456

    a("s_cmp_ge_u32 s2, 256")
    a(f"s_cbranch_scc1 {name}_end")
    a("s_cmp_lt_u32 s2, 64")
    a(f"s_cbranch_scc1 {name}_spare")
    a("s_sub_u32 s2, s2, 64")
    prof_start(a)
    code_prefetch(a, name, t0, f"v{V()}", 8)
    a("s_load_dwordx4 s[4:7], s[0:1], 0")
    a("s_load_dwordx4 s[8:11], s[0:1], 64") if False else None
    a("s_load_dwordx2 s[8:9], s[0:1], 72")
    a("s_load_dwordx2 s[10:11], s[0:1], 64")
    a(f"v_lshrrev_b32 v{t0}, 6, v0")
    a(f"v_and_b32 v{lane}, 63, v0")
    a(f"v_readfirstlane_b32 s24, v{t0}")
    a("s_and_b32 s25, s2, 7")
    a("s_lshr_b32 s26, s2, 3")
    a("s_and_b32 s27, s25, 3")
    a("s_lshl_b32 s27, s27, 2")
    a("s_and_b32 s28, s26, 3")
    a("s_add_u32 s27, s27, s28")
    a("s_lshr_b32 s28, s25, 2")
    a("s_mul_i32 s28, s28, 6")
    a("s_lshr_b32 s29, s26, 2")
    a("s_add_u32 s28, s28, s29")
    a("s_lshr_b32 s29, s28, 2")
    a("s_and_b32 s30, s28, 3")
    a("s_and_b32 s31, s24, 3")
    a("s_lshr_b32 s32, s24, 2")
    for par in range(2):
        a(f"v_lshrrev_b32 v{t0}, 4, v{lane}")
        if par: a(f"v_add_u32 v{t0}, 4, v{t0}")
        a(f"v_and_b32 v{t1}, 7, v{lane}")
        a(f"v_xor_b32 v{t0}, v{t0}, v{t1}")
        a(f"v_lshlrev_b32 v{t0}, 4, v{t0}")
        a(f"v_lshrrev_b32 v{t1}, 3, v{lane}")
        a(f"v_mul_u32_u24 v{t1}, 1152, v{t1}")
        a(f"v_add_u32 v{vx[par]}, v{t0}, v{t1}")
    a("s_lshl_b32 s35, s27, 7")
    a("s_lshl_b32 s36, s24, 4")
    a("s_add_u32 s35, s35, s36")
    a("s_mul_i32 s35, s35, 1152")
    a("s_lshl_b32 s37, s24, 11")
    a("s_mul_i32 s36, s29, 1152")
    a("s_mul_i32 s33, s30, 288")
    a("s_add_u32 s36, s36, s33")
    a("s_mul_i32 s55, s24, 3")
    a("s_lshl_b32 s33, s24, 1")
    a("s_add_u32 s33, s33, 4")
    a("s_cmp_lt_u32 s24, 4")
    a("s_cselect_b32 s55, s55, s33")
    a("s_lshl_b32 s38, s55, 10")
    a(f"s_add_u32 s38, s38, {WB}")
    a("s_waitcnt lgkmcnt(0)")
    srd(a, 12, 4, 0, 2048 * 1152)
    srd(a, 16, 6, 0, 576 * 3456)
    ops = []
    def dma_x(s):
        sl = s % 4
        return [[f"s_add_u32 m0, s37, {sl*XS + i*1024}", f"s_add_u32 s40, s35, {i*9216 + s*128}",
                 f"buffer_load_dwordx4 v{vx[i]}, s[12:15], s40 offen lds"] for i in range(2)]
    def dma_w(s, nh=None):
        sl = s % 4
        out = []
        for i in range(3):
            g = [f"s_add_u32 m0, s38, {sl*WSZ + i*1024}", f"s_add_u32 s40, s36, {s*64*3456}",
                 f"buffer_load_dwordx4 v{vw[i]}, s[16:19], s40 offen lds"]
            if i == 2:
                if nh == 1: continue
                if nh is None:
                    lab[0] += 1
                    g = ["s_cmp_ge_u32 s24, 4", f"s_cbranch_scc1 {name}_pw{lab[0]}"] + g + [f"{name}_pw{lab[0]}:"]
            out.append(g)
        return out
    lab = [0]
    def emit(groups, tag):
        for g in groups:
            for x in g: a(x)
            ops.append(tag)
    def wait_for(tag):
        last = max(i for i, t in enumerate(ops) if t == tag)
        return len(ops) - 1 - last
    emit(dma_x(0), "s0")
    m20, sh20 = magic_div(20, 1408)
    a("s_lshl_b32 s33, s55, 6")
    a(f"s_mov_b32 s34, {m20}")
    for i in range(3):
        a(f"v_add_u32 v{t0}, s33, v{lane}")
        if i: a(f"v_add_u32 v{t0}, {64*i}, v{t0}")
        a(f"v_mul_lo_u32 v{t1}, v{t0}, s34")
        a(f"v_lshrrev_b32 v{t1}, {sh20}, v{t1}")
        a(f"v_mul_u32_u24 v{t2}, 20, v{t1}")
        a(f"v_sub_u32 v{t2}, v{t0}, v{t2}")
        a(f"v_lshrrev_b32 v{t3}, 2, v{t2}")
        a(f"v_mul_u32_u24 v{t3}, 72, v{t3}")
        a(f"v_and_b32 v{t4}, 3, v{t2}")
        a(f"v_lshl_add_u32 v{t3}, v{t4}, 4, v{t3}")
        a(f"v_lshrrev_b32 v{t5}, 1, v{t4}")
        a(f"v_lshl_add_u32 v{t3}, v{t5}, 3, v{t3}")
        a(f"v_mul_u32_u24 v{t4}, 72, v{t4}")
        a(f"v_add_u32 v{t4}, 32, v{t4}")
        a(f"v_cmp_gt_u32 vcc, 16, v{t2}")
        a(f"v_mul_u32_u24 v{t1}, 3456, v{t1}")
        a("s_nop 0")
        a(f"v_cndmask_b32 v{t3}, v{t4}, v{t3}, vcc")
        a(f"v_add_u32 v{vw[i]}, v{t1}, v{t3}")
    emit(dma_w(0), "s0")
    emit(dma_x(1) + dma_w(1), "s1")
    ops_lo = list(ops)
    ops_hi = [t for i, t in enumerate(ops) if i not in (4, 9)]
    srd(a, 20, 8, 0, 0x900000)
    srd(a, 52, 8, WS["STAT"], 2048 * 8)
    srd(a, 56, 10, 0, 256)
    srd(a, 60, 8, WS["CSUM"], 1728 * 4)
    a(f"v_lshrrev_b32 v{vh}, 5, v{lane}")
    a(f"v_and_b32 v{tok}, 31, v{lane}")
    a(f"v_lshrrev_b32 v{t1}, 1, v{tok}")
    a(f"v_and_b32 v{t1}, 7, v{t1}")
    a("s_lshl_b32 s40, s31, 12")
    a(f"v_lshl_add_u32 v{t2}, v{tok}, 7, s40")
    for u in range(4):
        a(f"v_add_u32 v{t3}, {2*u}, v{vh}")
        a(f"v_xor_b32 v{t3}, v{t3}, v{t1}")
        a(f"v_lshl_add_u32 v{xaddr[u]}, v{t3}, 4, v{t2}")
    a(f"v_bfe_u32 v{t0}, v{lane}, 2, 2")
    a(f"v_lshl_add_u32 v{t0}, v{vh}, 3, v{t0}")
    a(f"v_mul_u32_u24 v{t0}, 320, v{t0}")
    a(f"v_add_u32 v{t0}, {WB}, v{t0}")
    a(f"v_and_b32 v{t1}, 3, v{lane}")
    a(f"v_lshlrev_b32 v{t2}, 4, v{t1}")
    a(f"v_add_u32 v{t2}, v{t2}, v{t0}")
    a(f"v_add_u32 v{wad[2][0]}, 256, v{t2}")
    a(f"v_add_u32 v{wad[2][1]}, {256+2*WSZ}, v{t2}")
    a(f"v_and_b32 v{t2}, 1, v{t1}")
    a(f"v_lshrrev_b32 v{t3}, 1, v{t1}")
    a(f"v_lshl_add_u32 v{t2}, v{t2}, 1, v{t3}")
    a(f"v_lshl_add_u32 v{t0}, v{t2}, 3, v{t0}")
    a(f"v_bfe_u32 v{t2}, v{lane}, 4, 1")
    a(f"v_lshl_add_u32 v{t0}, v{t2}, 5, v{t0}")
    a("s_and_b32 s39, s31, 1")
    for n in range(2):
        a(f"s_xor_b32 s40, s39, {n}")
        a("s_lshl_b32 s41, s32, 1")
        a("s_add_u32 s40, s40, s41")
        a("s_lshl_b32 s40, s40, 6")
        a(f"v_add_u32 v{wad[n][0]}, s40, v{t0}")
        a(f"v_add_u32 v{wad[n][1]}, {2*WSZ}, v{wad[n][0]}")
    for n in range(2):
        for i in range(16): a(f"v_mov_b32 v{acc[n]+i}, 0")
    for i in range(16): a(f"v_mov_b32 v{acce+i}, 0")
    for r in (R0, R1, CSM):
        for i in range(4): a(f"v_mov_b32 v{r+i}, 0")
    a(f"v_mov_b32 v{ones}, 0x3f803f80")
    ops[:] = ops_hi
    a(f"s_waitcnt vmcnt({wait_for('s0')})")
    a("s_barrier")
    prof_mark(a, 0)
    a("s_cmp_eq_u32 s32, 0")
    a(f"s_cbranch_scc0 {name}_nh1")
    ops_save = list(ops)

    for nh in range(2):
        ops[:] = list(ops_lo if nh == 0 else ops_hi)
        if nh: a(f"{name}_nh1:")
        nA = 3 if nh == 0 else 2
        def reads(n):
            s, u, p = n >> 2, n & 3, n & 1
            sl = s % 4
            out = [f"ds_read_b128 {vr(Bf[p],4)}, v{xaddr[u]} offset:{sl*XS}"]
            for nn in range(nA):
                for jj in range(2):
                    off = (sl & 1) * WSZ + (16*u + 4*jj) * 320
                    out.append(f"ds_read_b64_tr_b16 {vr(Af[p][nn]+2*jj,2)}, v{wad[nn][sl>>1]} offset:{off}")
            return out
        for x in reads(0): a(x)
        nrd = 1 + 2 * nA
        for n in range(36):
            s, u, p = n >> 2, n & 3, n & 1
            fill = []
            if u == 2 and s < 8:
                a(f"s_waitcnt vmcnt({wait_for(f's{s+1}')})")
                a("s_barrier")
                if s + 3 <= 8: fill = [(g, f"s{s+3}") for g in dma_x(s + 3) + dma_w(s + 3, nh)]
            if n == 0: fill = [(g, "s2") for g in dma_x(2) + dma_w(2, nh)]
            if n == 30:
                prof_mark(a, 1)
                a(f"v_mov_b32 v{t1}, 0")
                a("s_mov_b32 s43, 0x200000")
                a(f"{name}_poll{nh}:")
                a(f"buffer_load_dword v{t0}, v{t1}, s[56:59], 0 offen sc1")
                a("s_waitcnt vmcnt(0)")
                a(f"v_readfirstlane_b32 s48, v{t0}")
                a("s_sub_u32 s43, s43, 1")
                a("s_cmp_eq_u32 s43, 0")
                a(f"s_cbranch_scc1 {name}_go{nh}")
                a("s_cmp_ge_u32 s48, 64")
                a(f"s_cbranch_scc1 {name}_go{nh}")
                a("s_sleep 1")
                a(f"s_branch {name}_poll{nh}")
                a(f"{name}_go{nh}:")
                prof_mark(a, 2)
                a("s_mul_i32 s40, s29, 576")
                a("s_mul_i32 s41, s30, 144")
                a("s_add_u32 s42, s40, s41")
                for nn in range(2):
                    a(f"s_xor_b32 s40, s39, {nn}")
                    a("s_lshl_b32 s41, s32, 1")
                    a("s_add_u32 s40, s40, s41")
                    a("s_mul_i32 s40, s40, 36")
                    a("s_add_u32 s40, s40, s42")
                    a("s_lshl_b32 s40, s40, 2")
                    a(f"v_lshlrev_b32 v{t1}, 5, v{vh}")
                    for j, off in enumerate((0, 16, 80, 96)):
                        a(f"buffer_load_dwordx4 {vr(cs[nn]+4*j,4)}, v{t1}, s[60:63], s40 offen offset:{off} sc1")
                if nh == 0:
                    a("s_lshl_b32 s40, s42, 2")
                    a(f"v_mul_u32_u24 v{t1}, 144, v{vh}")
                    for j in range(2):
                        a(f"buffer_load_dwordx4 {vr(cx+4*j,4)}, v{t1}, s[60:63], s40 offen offset:{64 + 288*j} sc1")
                a("s_lshl_b32 s40, s27, 2")
                a("s_add_u32 s40, s40, s31")
                a("s_lshl_b32 s40, s40, 8")
                a(f"v_lshlrev_b32 v{t1}, 3, v{tok}")
                a(f"buffer_load_dwordx2 {vr(st,2)}, v{t1}, s[52:55], s40 offen sc1")
            rd = reads(n + 1) if n < 35 else []
            a("s_waitcnt lgkmcnt(0)")
            mf = [f"v_mfma_f32_32x32x16_bf16 {vr(acc[nn],16)}, {vr(Af[p][nn],4)}, {vr(Bf[p],4)}, {vr(acc[nn],16)}" for nn in range(2)]
            if nh == 0:
                mf.append(f"v_mfma_f32_32x32x16_bf16 {vr(acce,16)}, {vr(Af[p][2],4)}, {vr(Bf[p],4)}, {vr(acce,16)}")
            dots = []
            if 'nodots' in K1X: dots = []
            if 'nods' in K1X: rd = []
            if 'nob' in K1X: rd = rd[1:]
            if 'noa' in K1X: rd = rd[:1]
            if 'nodma' in K1X:
                for g, tag in fill: ops.append(tag)
                fill = []
            a(mf[0])
            for x in rd: a(x)
            per = -(-max(len(dots), 1) // len(mf))
            a(mf[1])
            for x in dots[:per]: a(x)
            if nh == 0: a(mf[2])
            for x in dots[per:]: a(x)
            for g, tag in fill: emit([g], tag)
        if nh == 0: a(f"s_branch {name}_epi")
    a(f"{name}_epi:")
    prof_mark(a, 3)
    a("s_lshl_b32 s41, s27, 2")
    a("s_add_u32 s48, s31, s41")
    a("s_lshr_b32 s40, s48, 3")
    a(f"s_mul_i32 s53, s40, {KVC}")
    a("s_and_b32 s54, s48, 7")
    a("s_lshl_b32 s49, s54, 10")
    a("s_add_u32 s49, s49, s53")
    a("s_mul_i32 s50, s54, 1280")
    a("s_add_u32 s50, s50, s53")
    a("s_add_u32 s50, s50, 9216")
    a("s_lshl_b32 s51, s48, 10")
    a("s_cmp_eq_u32 s29, 0")
    a(f"s_cselect_b32 s45, {WS['QF1']}, {WS['KV']}")
    a(f"s_mov_b32 s46, {KVH}")
    a(f"s_cselect_b32 s46, 65536, s46")
    a("s_cselect_b32 s47, s51, s49")
    a("s_cselect_b32 s44, 0x3eae1a93, 1.0")
    a("s_cmp_eq_u32 s29, 2")
    a("s_cselect_b32 s47, s50, s47")
    a("s_cselect_b64 vcc, -1, 0")
    a("s_add_u32 s47, s47, s45")
    a(f"v_lshlrev_b32 v{vl}, 4, v{lane}")
    a(f"v_mul_u32_u24 v{t1}, 40, v{tok}")
    a(f"v_lshl_add_u32 v{t1}, v{vh}, 4, v{t1}")
    a(f"v_cndmask_b32 v{vl}, v{vl}, v{t1}, vcc")
    a("s_waitcnt vmcnt(0)")
    a(f"v_mov_b32 v{mean}, v{st}")
    a(f"v_mul_f32 v{rs}, s44, v{st+1}")
    def norm(dst, accb, csb, nreg):
        for i in range(nreg):
            a(f"v_fma_f32 v{accb+i}, -v{mean}, v{csb+i}, v{accb+i}")
        for i in range(nreg):
            a(f"v_mul_f32 v{accb+i}, v{rs}, v{accb+i}")
        for i in range(nreg // 2):
            a(f"v_cvt_pk_bf16_f32 v{dst+i}, v{accb+2*i}, v{accb+2*i+1}")
    for n in range(2):
        dst = pk if n == 0 else cs[0]
        norm(dst, acc[n], cs[n], 16)
        a(f"s_xor_b32 s40, s39, {n}")
        a("s_lshl_b32 s41, s32, 1")
        a("s_add_u32 s40, s40, s41")
        a("s_lshl_b32 s41, s30, 2")
        a("s_add_u32 s40, s40, s41")
        a("s_lshl_b32 s40, s40, 1")
        a("s_mul_i32 s40, s40, s46")
        a("s_add_u32 s40, s40, s47")
        a(f"buffer_store_dwordx4 {vr(dst,4)}, v{vl}, s[20:23], s40 offen{K1SC}")
        a("s_add_u32 s40, s40, s46")
        a(f"buffer_store_dwordx4 {vr(dst+4,4)}, v{vl}, s[20:23], s40 offen{K1SC}")
    a("s_cmp_eq_u32 s32, 0")
    a(f"s_cbranch_scc0 {name}_fin")
    a(f"{name}_ext:")
    ep = cs[1]
    norm(ep, acce, cx, 8)
    a("s_cmp_eq_u32 s29, 2")
    a(f"s_cbranch_scc1 {name}_extv")
    a("s_lshl_b32 s51, s48, 7")
    a(f"s_add_u32 s51, s51, {WS['QF2']}")
    a("s_lshl_b32 s41, s54, 7")
    a("s_add_u32 s40, s53, s41")
    a(f"s_add_u32 s40, s40, {WS['KV'] + 8192}")
    a("s_cmp_eq_u32 s29, 0")
    a("s_cselect_b32 s51, s51, s40")
    a(f"s_mov_b32 s52, {KVH}")
    a(f"s_cselect_b32 s52, 8192, s52")
    for j in range(2):
        a("s_lshl_b32 s40, s30, 2")
        a(f"s_add_u32 s40, s40, {2*j}")
        a(f"v_add_u32 v{t1}, s40, v{vh}")
        a(f"v_lshlrev_b32 v{t1}, 1, v{t1}")
        a(f"v_mul_lo_u32 v{t1}, v{t1}, s52")
        a(f"v_lshl_add_u32 v{t1}, v{tok}, 2, v{t1}")
        a(f"buffer_store_dword v{ep+2*j}, v{t1}, s[20:23], s51 offen{K1SC}")
        a("s_add_u32 s40, s51, s52")
        a(f"buffer_store_dword v{ep+2*j+1}, v{t1}, s[20:23], s40 offen{K1SC}")
    a(f"s_branch {name}_fin")
    a(f"{name}_extv:")
    a(f"s_add_u32 s51, s50, {WS['KV'] + 32}")
    a(f"s_mov_b32 s52, {KVH}")
    for j in range(2):
        a("s_lshl_b32 s40, s30, 2")
        a(f"s_add_u32 s40, s40, {2*j}")
        a(f"v_add_u32 v{t1}, s40, v{vh}")
        a(f"v_lshlrev_b32 v{t1}, 1, v{t1}")
        a(f"v_mul_lo_u32 v{t1}, v{t1}, s52")
        a(f"v_mul_u32_u24 v{t2}, 40, v{tok}")
        a(f"v_add_u32 v{t1}, v{t1}, v{t2}")
        for hb in range(2):
            d = ep + 4 + 4*j + 2 * hb
            a(f"v_mov_b32 v{d}, v{ep+2*j+hb}")
            a(f"v_mov_b32 v{d+1}, 0x00003f80")
            if hb: a("s_add_u32 s40, s51, s52")
            else: a("s_mov_b32 s40, s51")
            a(f"buffer_store_dwordx2 {vr(d,2)}, v{t1}, s[20:23], s40 offen{K1SC}")
    a(f"{name}_fin:")
    prof_end(a, 1, 8)
    a("s_endpgm")
    a(f"{name}_spare:")
    gen_spare(a, name, acc, acce, cs, [t0, t1, t2, t3, t4, t5, lane], V)
    a(f"{name}_end:")
    a("s_endpgm")
    kernel_end(a, name, V.hi, (V.hi + 3) // 4 * 4)
    return a.text(), EX + 2048
```

```python
class Asm:
    def __init__(self):
        self.l = []
    def __call__(self, s=""):
        for x in s.split("\n"):
            x = x.strip()
            if not x: continue
            if x.endswith(":") or x.startswith("."): self.l.append(x)
            else: self.l.append("  " + x)
    def text(self): return "\n".join(self.l) + "\n"

class Alloc:
    def __init__(self, start, limit, kind):
        self.n = start; self.limit = limit; self.kind = kind; self.hi = start
    def __call__(self, cnt=1, align=1):
        self.n = (self.n + align - 1) // align * align
        b = self.n; self.n += cnt
        assert self.n <= self.limit, f"out of {self.kind} registers ({self.n})"
        self.hi = max(self.hi, self.n)
        return b

def vr(b, n=1, k="v"):
    return f"{k}{b}" if n == 1 else f"{k}[{b}:{b+n-1}]"
def sr(b, n=1): return vr(b, n, "s")
def ar(b, n=1): return vr(b, n, "a")

def srd(a, dst, ptr, off, size, tmp=None):
    if off:
        a(f"s_add_u32 s{dst}, s{ptr}, {off}")
        a(f"s_addc_u32 s{dst+1}, s{ptr+1}, 0")
    else:
        a(f"s_mov_b32 s{dst}, s{ptr}")
        a(f"s_mov_b32 s{dst+1}, s{ptr+1}")
    a(f"s_mov_b32 s{dst+2}, {size}")
    a(f"s_mov_b32 s{dst+3}, 0x00020000")

def kernel_begin(a, name):
    a(".text")
    a(f".globl {name}")
    a(".p2align 8")
    a(f".type {name},@function")
    a(f"{name}:")

def kernel_end(a, name, nvgpr, accum, nsgpr=100):
    a(f""".section .rodata,"a"
.p2align 6
.amdhsa_kernel {name}
.amdhsa_next_free_vgpr {nvgpr}
.amdhsa_next_free_sgpr {nsgpr}
.amdhsa_accum_offset {accum}
.amdhsa_group_segment_fixed_size 0
.amdhsa_kernarg_size 80
.amdhsa_user_sgpr_count 2
.amdhsa_user_sgpr_kernarg_segment_ptr 1
.amdhsa_system_sgpr_workgroup_id_x 1
.amdhsa_float_denorm_mode_32 3
.amdhsa_ieee_mode 0
.end_amdhsa_kernel""")

def magic_div(d, maxn, bits=16):
    for sh in range(bits, 32):
        m = -(-(1 << sh) // d)
        if (maxn - 1) * m >= (1 << 32): break
        if all(((n * m) >> sh) == n // d for n in range(maxn)): return m, sh
    raise ValueError("no magic")

WS = dict(
    QF1=0x0000000, QF2=0x0200000, KV=0x0300000, MEANX=0x0800000, STAT=0x0810000, MEAN2=0x0830000, CSUM=0x0820000, WOP=0x0900000,
    OF=0x0A00000, XF=0x0D00000, HR=0x1000000, PSS=0x1300000, WGU=0x1400000,
    WD=0x2000000, HF=0x2600000, PART=0x3800000)
KVH = 155648
KVC = 19456
ARG = dict(x=0, wqkv=8, wo=16, bx=24, wg=32, wu=40, wd=48, out=56, dbg=64, ws=72)

import os
PROF = bool(os.environ.get("PROF"))
PROF_OFF = 0x5000000
def prof_start(a):
    if not PROF: return
    a("s_memtime s[80:81]")
    a("s_memrealtime s[82:83]")
def prof_mark(a, k):
    if not PROF or os.environ.get("PROF") == "2": return
    if os.environ.get("PROF") == "3": a(f"s_memrealtime s[{64+2*k}:{65+2*k}]")
    else: a(f"s_memtime s[{64+2*k}:{65+2*k}]")
def prof_end(a, kidx, wsreg=8, nw=8):
    if not PROF: return
    a("s_waitcnt vmcnt(0) lgkmcnt(0)")
    a("s_memtime s[84:85]")
    a("s_memrealtime s[86:87]")
    a("s_waitcnt lgkmcnt(0)")
    a(f"s_add_u32 s88, s{wsreg}, {PROF_OFF + kidx * 0x100000}")
    a(f"s_addc_u32 s89, s{wsreg+1}, 0")
    a("s_mov_b32 s90, 0x100000")
    a("s_mov_b32 s91, 0x00020000")
    a("v_lshrrev_b32 v1, 6, v0")
    a("s_lshl_b32 s92, s2, 4")
    a("v_add_u32 v1, s92, v1")
    a("v_lshlrev_b32 v1, 6, v1")
    for i in range(8):
        a(f"v_mov_b32 v{2+i}, s{80+i}")
    for i in range(8):
        a(f"v_mov_b32 v{10+i}, s{64+i}")
    a("v_and_b32 v18, 63, v0")
    a("v_cmp_eq_u32 vcc, 0, v18")
    a("s_nop 1")
    a("s_and_saveexec_b64 s[92:93], vcc")
    for i in range(4):
        a(f"buffer_store_dwordx4 v[{2+4*i}:{5+4*i}], v1, s[88:91], 0 offen offset:{16*i}")
    a("s_mov_b64 exec, s[92:93]")


class VmOps:
    def __init__(self): self.l = []; self.n = 0
    def add(self, tag, cls="all"): self.l.append((tag, cls))
    def wait(self, tag):
        res = []
        for c in ("lo", "hi"):
            ops = [t for t, k in self.l if k == "all" or c == "lo"]
            idx = [i for i, t in enumerate(ops) if t == tag]
            if idx: res.append(len(ops) - 1 - max(idx))
        return min(min(res), 63)
    def label(self, base):
        self.n += 1
        return f"{base}_sk{self.n}"

def slice36(a, dst, w="s24"):
    a(f"s_mul_i32 {dst}, {w}, 5120")
    a(f"s_lshl_b32 s99, {w}, 12")
    a("s_add_u32 s99, s99, 4096")
    a(f"s_cmp_lt_u32 {w}, 4")
    a(f"s_cselect_b32 {dst}, {dst}, s99")


def code_prefetch(a, name, vtmp, vdst, nwaves, sreg=94):
    if os.environ.get("NOPF"): return
    per = 8 // nwaves
    a(f"s_getpc_b64 s[{sreg}:{sreg+1}]")
    a(f"{name}_pc:")
    a(f"s_sub_u32 s{sreg}, s{sreg}, {name}_pc-code_begin")
    a(f"s_subb_u32 s{sreg+1}, s{sreg+1}, 0")
    for i in range(per):
        a(f"v_lshlrev_b32 v{vtmp}, 7, v0")
        if i: a(f"v_add_u32 v{vtmp}, {i * nwaves * 8192}, v{vtmp}")
        a(f"v_min_u32 v{vtmp}, code_end-code_begin-4, v{vtmp}")
        a(f"global_load_dword {vdst}, v{vtmp}, s[{sreg}:{sreg+1}]")


def l2_touch(a, srd_, vtmp, vdst, lane, sfirst, nlines, extra=0):
    if not os.environ.get("TOUCH"): return
    a(f"s_mul_i32 s97, {sfirst}, {nlines * 128}")
    if extra: a(f"s_add_u32 s97, s97, {extra}")
    a(f"v_lshlrev_b32 v{vtmp}, 7, v{lane}")
    a(f"v_cmp_gt_u32 vcc, {nlines}, v{lane}")
    a(f"v_mov_b32 {vdst}, 0x7ff00000") if vdst.startswith("v") else None
    a("s_nop 0")
    a(f"v_cndmask_b32 v{vtmp}, {vdst}, v{vtmp}, vcc")
    a(f"buffer_load_dword {vdst}, v{vtmp}, {srd_}, s97 offen")
```

```python
from asmlib import *
from k0 import wave_sum
import os
K1X = os.environ.get('K1X', '')
K1SC = os.environ.get('K1SC', '')
WOPSC = os.environ.get('WOPSC', ' sc1')

def jobC_row(a, u, dst):
    a(f"s_lshr_b32 s80, {u}, 4")
    a(f"s_and_b32 s81, {u}, 15")
    a("s_mul_i32 s82, s80, 18")
    a("s_and_b32 s83, s80, 1")
    a("s_lshl_b32 s83, s83, 1")
    a("s_add_u32 s82, s82, s83")
    a("s_add_u32 s82, s82, s81")
    a("s_sub_u32 s84, s80, 32")
    a("s_lshl_b32 s84, s84, 3")
    a("s_bfe_u32 s85, s81, 0x10002")
    a("s_lshl_b32 s85, s85, 2")
    a("s_add_u32 s84, s84, s85")
    a("s_lshr_b32 s85, s81, 3")
    a("s_lshl_b32 s85, s85, 1")
    a("s_add_u32 s84, s84, s85")
    a("s_mul_i32 s84, s84, 18")
    a("s_and_b32 s85, s81, 3")
    a("s_add_u32 s84, s84, s85")
    a("s_add_u32 s84, s84, 16")
    a("s_cmp_lt_u32 s80, 32")
    a("s_cselect_b32 s82, s82, s84")
    a(f"s_mul_i32 {dst}, s82, 1152")

def gen_jobC_load(a, name, E, T):
    t0, t1, t2, t3, t4, t5, lane = T
    a("s_load_dwordx2 s[14:15], s[0:1], 16")
    a("s_sub_u32 s86, s2, 27")
    a("s_lshl_b32 s86, s86, 3")
    a("s_add_u32 s86, s86, s24")
    a("s_add_u32 s87, s86, 296")
    jobC_row(a, "s86", "s88")
    jobC_row(a, "s87", "s89")
    a("s_cmp_lt_u32 s87, 576")
    a("s_cselect_b32 s89, s89, 0x7f000000")
    a(f"v_lshrrev_b32 v{t3}, 2, v{lane}")
    a(f"v_and_b32 v{t4}, 3, v{lane}")
    a(f"v_mul_u32_u24 v{t3}, 72, v{t3}")
    a(f"v_lshl_add_u32 v{t4}, v{t4}, 4, v{t3}")
    a("s_waitcnt lgkmcnt(0)")
    srd(a, 90, 14, 0, 576 * 1152) if False else None
    a("s_mov_b32 s92, s14"); a("s_mov_b32 s93, s15"); a(f"s_mov_b32 s94, {576*1152}"); a("s_mov_b32 s95, 0x00020000")
    for r, row in enumerate(("s88", "s89")):
        a(f"buffer_load_dwordx4 {vr(E+8*r,4)}, v{t4}, s[92:95], {row} offen")
        a(f"buffer_load_dwordx2 {vr(E+8*r+4,2)}, v{t3}, s[92:95], {row} offen offset:64")

def gen_jobC_store(a, name, E, F, T):
    t0, t1, t2, t3, t4, t5, lane = T
    srd(a, 32, 8, WS["WOP"], 16 * 46080)
    a(f"v_lshrrev_b32 v{t3}, 2, v{lane}")
    a(f"v_and_b32 v{t4}, 3, v{lane}")
    a("s_mov_b32 s46, 46080")
    a(f"v_mul_lo_u32 v{t3}, v{t3}, s46")
    a(f"v_lshl_add_u32 v{t4}, v{t4}, 4, v{t3}")
    for r, u in enumerate(("s86", "s87")):
        D = E + 8*r
        if r:
            a("s_cmp_ge_u32 s87, 576")
            a(f"s_cbranch_scc1 {name}_end")
        a(f"v_mov_b32 v{F}, 0x3f803f80")
        a(f"v_mov_b32 v{F+1}, 0")
        a(f"v_mov_b32 v{F+2}, 0")
        for i in range(4): a(f"v_dot2_f32_bf16 v{F+1}, v{D+i}, v{F}, v{F+1}")
        for i in range(2): a(f"v_dot2_f32_bf16 v{F+2}, v{D+4+i}, v{F}, v{F+2}")
        a("s_nop 2")
        a(f"v_mul_f32 v{F+2}, 0.5, v{F+2}")
        a(f"v_mul_f32 v{F+2}, 0.5, v{F+2}")
        a(f"v_add_f32 v{F+1}, v{F+1}, v{F+2}")
        wave_sum(a, F+1, F+3)
        a(f"v_mul_f32 v{F+1}, 0x3ae38e39, v{F+1}")
        a(f"v_cvt_pk_bf16_f32 v{D+6}, v{F+1}, v{F+1}")
        a(f"v_lshlrev_b32 v{F+3}, 16, v{D+6}")
        a(f"v_sub_f32 v{F+3}, v{F+1}, v{F+3}")
        a(f"v_cvt_pk_bf16_f32 v{D+6}, v{F+1}, v{F+3}")
        a(f"v_mov_b32 v{D+7}, 0")
        a(f"s_lshl_b32 s47, {u}, 6")
        a(f"buffer_store_dwordx4 {vr(D,4)}, v{t4}, s[32:35], s47 offen{WOPSC}")
        a(f"s_lshl_b32 s47, {u}, 4")
        a("s_add_u32 s47, s47, 36864")
        a(f"buffer_store_dwordx4 {vr(D+4,4)}, v{t3}, s[32:35], s47 offen{WOPSC}")

def gen_jobB_load(a, name, D, T):
    t0, t1, t2, t3, t4, t5, lane = T
    BIG = 0x7f000000
    a("s_load_dwordx4 s[44:47], s[0:1], 32")
    a("s_load_dwordx2 s[48:49], s[0:1], 48")
    a("s_lshl_b32 s40, s2, 3")
    a("s_add_u32 s40, s40, s24")
    a(f"v_lshrrev_b32 v{t0}, 2, v{lane}")
    a(f"v_and_b32 v{t1}, 3, v{lane}")
    a(f"v_mul_u32_u24 v{t2}, 1152, v{t0}")
    a(f"v_lshl_add_u32 v{t2}, v{t1}, 4, v{t2}")
    a(f"v_lshrrev_b32 v{t3}, 1, v{lane}")
    a(f"v_and_b32 v{t4}, 1, v{lane}")
    a(f"v_mul_u32_u24 v{t3}, 1152, v{t3}")
    a(f"v_lshl_add_u32 v{t3}, v{t4}, 4, v{t3}")
    a(f"v_lshlrev_b32 v{t5}, 4, v{lane}")
    a("s_and_b32 s50, s40, 3")
    a("s_bfe_u32 s51, s40, 0x20002")
    a("s_lshr_b32 s64, s40, 4")
    a("s_mul_i32 s65, s64, 18432")
    a("s_mul_i32 s66, s51, 288")
    a("s_add_u32 s65, s65, s66")
    a("s_lshl_b32 s66, s50, 6")
    a("s_add_u32 s65, s65, s66")
    a("s_lshr_b32 s66, s64, 2")
    a("s_mul_i32 s67, s51, 72")
    a("s_add_u32 s66, s66, s67")
    a("s_mul_i32 s66, s66, 18432")
    a("s_lshl_b32 s67, s50, 12")
    a("s_add_u32 s66, s66, s67")
    a("s_and_b32 s67, s64, 3")
    a("s_lshl_b32 s67, s67, 10")
    a("s_add_u32 s66, s66, s67")
    a("s_lshr_b32 s51, s40, 2")
    a("s_mul_i32 s68, s51, 36864")
    a("s_mul_i32 s69, s50, 288")
    a("s_add_u32 s68, s68, s69")
    a("s_add_u32 s68, s68, 256")
    a("s_lshr_b32 s69, s51, 1")
    a("s_mul_i32 s70, s50, 72")
    a("s_add_u32 s69, s69, s70")
    a("s_mul_i32 s69, s69, 18432")
    a("s_add_u32 s69, s69, 16384")
    a("s_and_b32 s70, s51, 1")
    a("s_lshl_b32 s70, s70, 10")
    a("s_add_u32 s69, s69, s70")
    a(f"s_add_u32 s70, s68, {128*36864}")
    a(f"s_add_u32 s71, s69, {64*18432}")
    a("s_cmp_lt_u32 s40, 64")
    a(f"s_cselect_b32 s70, s70, {BIG}")
    a(f"s_cselect_b32 s71, s71, {BIG}")
    a("s_waitcnt lgkmcnt(0)")
    srd(a, 76, 48, 0, 4608 * 1152)
    for t in range(9):
        a(f"s_add_u32 s50, s65, {32*18432*t}")
        a(f"buffer_load_dwordx4 {vr(D+4*t,4)}, v{t2}, s[76:79], s50 offen")
    a(f"buffer_load_dwordx4 {vr(D+36,4)}, v{t3}, s[76:79], s68 offen")
    a(f"buffer_load_dwordx4 {vr(D+40,4)}, v{t3}, s[76:79], s70 offen")
    a("s_cmp_ge_u32 s40, 288")
    a(f"s_cbranch_scc1 {name}_nota")
    a("s_lshr_b32 s41, s40, 2")
    a("s_cmp_ge_u32 s41, 36")
    a("s_cselect_b32 s42, 1, 0")
    a("s_mul_i32 s43, s42, 36")
    a("s_sub_u32 s43, s41, s43")
    a("s_add_u32 s42, s42, 70")
    a("s_lshl_b32 s42, s42, 2")
    a("s_and_b32 s50, s40, 3")
    a("s_add_u32 s42, s42, s50")
    a("s_mul_i32 s50, s43, 147456")
    a("s_lshl_b32 s51, s42, 5")
    a("s_add_u32 s72, s50, s51")
    a("s_mul_i32 s50, s42, 36864")
    a("s_lshl_b32 s51, s43, 10")
    a("s_add_u32 s73, s50, s51")
    a("s_mov_b32 s50, 9216")
    a(f"v_mul_lo_u32 v{t3}, v{t0}, s50")
    a(f"v_and_b32 v{t4}, 1, v{t1}")
    a(f"v_lshl_add_u32 v{t3}, v{t4}, 4, v{t3}")
    a(f"v_add_u32 v{t3}, s72, v{t3}")
    a(f"v_cmp_gt_u32 vcc, 2, v{t1}")
    a(f"v_mov_b32 v{D+48}, s46")
    a(f"v_mov_b32 v{t4}, s44")
    a(f"v_cndmask_b32 v{D+48}, v{D+48}, v{t4}, vcc")
    a(f"v_mov_b32 v{D+49}, s47")
    a(f"v_mov_b32 v{t4}, s45")
    a(f"v_cndmask_b32 v{D+49}, v{D+49}, v{t4}, vcc")
    a(f"v_add_co_u32 v{D+48}, vcc, v{D+48}, v{t3}")
    a("s_nop 1")
    a(f"v_addc_co_u32 v{D+49}, vcc, 0, v{D+49}, vcc")
    a(f"global_load_dwordx4 {vr(D+44,4)}, {vr(D+48,2)}, off")
    a(f"{name}_nota:")

def gen_jobB_store(a, name, D, T):
    t0, t1, t2, t3, t4, t5, lane = T
    srd(a, 52, 8, WS["WGU"], 288 * 36864)
    srd(a, 56, 8, WS["WD"], 4 * 72 * 18432)
    a(f"v_lshlrev_b32 v{t5}, 4, v{lane}")
    for t in range(9):
        a(f"s_add_u32 s50, s66, {8*18432*t}")
        a(f"buffer_store_dwordx4 {vr(D+4*t,4)}, v{t5}, s[56:59], s50 offen sc1")
    a(f"buffer_store_dwordx4 {vr(D+36,4)}, v{t5}, s[56:59], s69 offen sc1")
    a(f"buffer_store_dwordx4 {vr(D+40,4)}, v{t5}, s[56:59], s71 offen sc1")
    a("s_cmp_ge_u32 s40, 288")
    a(f"s_cbranch_scc1 {name}_nota2")
    a(f"buffer_store_dwordx4 {vr(D+44,4)}, v{t5}, s[52:55], s73 offen sc1")
    a(f"{name}_nota2:")

def gen_spare(a, name, acc, acce, cs, T, V):
    t0, t1, t2, t3, t4, t5, lane = T
    X = acc[0]
    assert acc[1] == acc[0] + 16
    W = acce
    a("s_load_dwordx4 s[4:7], s[0:1], 0")
    a("s_load_dwordx2 s[8:9], s[0:1], 72")
    a("s_load_dwordx2 s[10:11], s[0:1], 64")
    a(f"v_lshrrev_b32 v{t0}, 6, v0")
    a(f"v_and_b32 v{lane}, 63, v0")
    a(f"v_readfirstlane_b32 s24, v{t0}")
    a("s_waitcnt lgkmcnt(0)")
    srd(a, 12, 4, 0, 2048 * 1152)
    srd(a, 16, 6, 0, 576 * 3456)
    srd(a, 52, 8, WS["STAT"], 2048 * 8)
    srd(a, 56, 10, 0, 256)
    srd(a, 60, 8, WS["CSUM"], 1728 * 4)
    a("s_lshl_b32 s25, s2, 3")
    a("s_add_u32 s25, s25, s24")
    a("s_lshl_b32 s25, s25, 2")
    a("s_mul_i32 s26, s25, 1152")
    a(f"v_lshrrev_b32 v{t0}, 4, v{lane}")
    a(f"v_and_b32 v{t1}, 15, v{lane}")
    a(f"v_mul_u32_u24 v{t2}, 1152, v{t0}")
    a(f"v_lshl_add_u32 v{t2}, v{t1}, 4, v{t2}")
    for i in range(4):
        a(f"buffer_load_dwordx4 {vr(X+4*i,4)}, v{t2}, s[12:15], s26 offen offset:{256*i}")
    a(f"v_cmp_gt_u32 vcc, 8, v{t1}")
    a(f"v_add_u32 v{t3}, 1024, v{t2}")
    a(f"v_mov_b32 v{t4}, 0x7ff00000")
    a(f"v_cndmask_b32 v{t3}, v{t4}, v{t3}, vcc")
    a(f"buffer_load_dwordx4 {vr(X+16,4)}, v{t3}, s[12:15], s26 offen")
    EC = V(16, 4); FC = V(4, 4)
    C = cs[0]
    a("s_cmp_ge_u32 s2, 27")
    a(f"s_cbranch_scc1 {name}_nocsld")
    a("s_mul_i32 s27, s24, 72*3456")
    a("s_lshl_b32 s28, s2, 7")
    a("s_add_u32 s27, s27, s28")
    a(f"v_lshrrev_b32 v{t3}, 3, v{lane}")
    a(f"v_mul_u32_u24 v{t3}, 3456, v{t3}")
    a(f"v_and_b32 v{t4}, 7, v{lane}")
    a(f"v_lshl_add_u32 v{t3}, v{t4}, 4, v{t3}")
    for i in range(9):
        a(f"buffer_load_dwordx4 {vr(C+4*i,4)}, v{t3}, s[16:19], s27 offen")
        if i < 8: a("s_add_u32 s27, s27, 8*3456")
    a(f"s_branch {name}_ldrest")
    a(f"{name}_nocsld:")
    gen_jobC_load(a, name, EC, T)
    a(f"{name}_ldrest:")
    a(f"v_lshrrev_b32 v{t0}, 4, v{lane}")
    S1, S2, ONE = acce, acce + 1, acce + 2
    a(f"v_mov_b32 v{S1}, 0"); a(f"v_mov_b32 v{S2}, 0"); a(f"v_mov_b32 v{ONE}, 0x3f803f80")
    a("s_waitcnt vmcnt(0)")
    for i in range(20):
        a(f"v_dot2c_f32_bf16 v{S1}, v{X+i}, v{ONE}")
        a(f"v_dot2c_f32_bf16 v{S2}, v{X+i}, v{X+i}")
    a("s_nop 2")
    for r in (S1, S2):
        for mod in ("quad_perm:[1,0,3,2]", "quad_perm:[2,3,0,1]", "row_half_mirror", "row_mirror"):
            a("s_nop 1")
            a(f"v_add_f32_dpp v{r}, v{r}, v{r} {mod} row_mask:0xf bank_mask:0xf")
    a(f"v_mul_f32 v{S1}, 0x3ae38e39, v{S1}")
    a(f"v_mul_f32 v{S2}, 0x3ae38e39, v{S2}")
    a(f"v_fma_f32 v{S2}, -v{S1}, v{S1}, v{S2}")
    a(f"v_max_f32 v{S2}, 0, v{S2}")
    a(f"v_add_f32 v{S2}, 0x3727c5ac, v{S2}")
    a(f"v_rsq_f32 v{S2}, v{S2}")
    a(f"v_lshlrev_b32 v{t2}, 3, v{t0}")
    a("s_lshl_b32 s26, s25, 3")
    a(f"buffer_store_dwordx2 {vr(S1,2)}, v{t2}, s[52:55], s26 offen sc1")
    a("s_cmp_ge_u32 s2, 27")
    a(f"s_cbranch_scc1 {name}_signal")
    A8 = acc[0]
    for k in range(8): a(f"v_mov_b32 v{A8+k}, 0")
    for i in range(9):
        for r in range(4):
            a(f"v_lshlrev_b32 v{t2}, 16, v{C+4*i+r}")
            a(f"v_and_b32 v{t3}, 0xffff0000, v{C+4*i+r}")
            a(f"v_add_f32 v{A8+2*r}, v{A8+2*r}, v{t2}")
            a(f"v_add_f32 v{A8+2*r+1}, v{A8+2*r+1}, v{t3}")
    for k in range(8):
        a("s_nop 1")
        a(f"v_add_f32_dpp v{A8+k}, v{A8+k}, v{A8+k} row_ror:8 row_mask:0xf bank_mask:0xf")
    for swap in ("v_permlane16_swap_b32", "v_permlane32_swap_b32"):
        for k in range(8):
            a(f"v_mov_b32 v{t2}, v{A8+k}")
            a("s_nop 1")
            a(f"{swap} v{t2}, v{A8+k}")
            a(f"v_add_f32 v{A8+k}, v{A8+k}, v{t2}")
    a(f"v_and_b32 v{t2}, 7, v{lane}")
    a(f"v_lshlrev_b32 v{t2}, 5, v{t2}")
    a("s_lshl_b32 s27, s24, 8")
    a(f"v_add_u32 v{t2}, s27, v{t2}")
    a(f"ds_write_b128 v{t2}, {vr(A8,4)}")
    a(f"ds_write_b128 v{t2}, {vr(A8+4,4)} offset:16")
    a("s_waitcnt lgkmcnt(0)")
    a("s_barrier")
    a(f"v_lshlrev_b32 v{t2}, 2, v{lane}")
    for k in range(8): a(f"ds_read_b32 v{X+8+k}, v{t2} offset:{256*k}")
    a("s_waitcnt lgkmcnt(0)")
    for k in range(1, 8): a(f"v_add_f32 v{X+8}, v{X+8}, v{X+8+k}")
    a("s_lshl_b32 s27, s2, 8")
    a(f"buffer_store_dword v{X+8}, v{t2}, s[60:63], s27 offen sc1")
    a(f"{name}_signal:")
    a("s_waitcnt vmcnt(0)")
    a("s_barrier")
    a("s_cmp_lg_u32 s24, 0")
    a(f"s_cbranch_scc1 {name}_jobc")
    a(f"v_mov_b32 v{t2}, 1")
    a(f"v_mov_b32 v{t3}, 0")
    a("s_mov_b64 exec, 1")
    a(f"buffer_atomic_add v{t2}, v{t3}, s[56:59], 0 offen sc1")
    a("s_mov_b64 exec, -1")
    a(f"{name}_jobc:")
    a("s_cmp_lt_u32 s2, 27")
    a(f"s_cbranch_scc1 {name}_end")
    gen_jobC_store(a, name, EC, FC, T)

def gen_k1(name="qkv_kernel"):
    a = Asm()
    kernel_begin(a, name)
    V = Alloc(1, 256, "v")
    t0, t1, t2 = V(), V(), V()
    acc = [V(16, 4) for n in range(2)]
    acce = V(16, 4)
    Bf = [V(4, 4) for p in range(2)]
    Af = [[V(4, 4) for n in range(3)] for p in range(2)]
    cs = [V(16, 4) for n in range(2)]
    cx = V(8, 4)
    pk = V(8, 4)
    st = V(2, 2)
    xaddr = [V() for u in range(4)]
    wad = [[V() for sl in range(2)] for n in range(3)]
    vx = [V() for _ in range(2)]
    vw = [V() for _ in range(3)]
    R0, R1, CSM = V(4), V(4), V(4)
    r0, r1, csm, ones = R0, R1, CSM, V()
    t3, t4, t5 = V(), V(), V()
    lane, vh, tok, mean, rs, vl = [V() for _ in range(6)]
    XS = 16384; WB = 65536; WSZ = 20480; EX = 147456

    a("s_cmp_ge_u32 s2, 256")
    a(f"s_cbranch_scc1 {name}_end")
    a("s_cmp_lt_u32 s2, 64")
    a(f"s_cbranch_scc1 {name}_spare")
    a("s_sub_u32 s2, s2, 64")
    prof_start(a)
    code_prefetch(a, name, t0, f"v{V()}", 8)
    a("s_load_dwordx4 s[4:7], s[0:1], 0")
    a("s_load_dwordx4 s[8:11], s[0:1], 64") if False else None
    a("s_load_dwordx2 s[8:9], s[0:1], 72")
    a("s_load_dwordx2 s[10:11], s[0:1], 64")
    a(f"v_lshrrev_b32 v{t0}, 6, v0")
    a(f"v_and_b32 v{lane}, 63, v0")
    a(f"v_readfirstlane_b32 s24, v{t0}")
    a("s_and_b32 s25, s2, 7")
    a("s_lshr_b32 s26, s2, 3")
    a("s_and_b32 s27, s25, 3")
    a("s_lshl_b32 s27, s27, 2")
    a("s_and_b32 s28, s26, 3")
    a("s_add_u32 s27, s27, s28")
    a("s_lshr_b32 s28, s25, 2")
    a("s_mul_i32 s28, s28, 6")
    a("s_lshr_b32 s29, s26, 2")
    a("s_add_u32 s28, s28, s29")
    a("s_lshr_b32 s29, s28, 2")
    a("s_and_b32 s30, s28, 3")
    a("s_and_b32 s31, s24, 3")
    a("s_lshr_b32 s32, s24, 2")
    for par in range(2):
        a(f"v_lshrrev_b32 v{t0}, 4, v{lane}")
        if par: a(f"v_add_u32 v{t0}, 4, v{t0}")
        a(f"v_and_b32 v{t1}, 7, v{lane}")
        a(f"v_xor_b32 v{t0}, v{t0}, v{t1}")
        a(f"v_lshlrev_b32 v{t0}, 4, v{t0}")
        a(f"v_lshrrev_b32 v{t1}, 3, v{lane}")
        a(f"v_mul_u32_u24 v{t1}, 1152, v{t1}")
        a(f"v_add_u32 v{vx[par]}, v{t0}, v{t1}")
    a("s_lshl_b32 s35, s27, 7")
    a("s_lshl_b32 s36, s24, 4")
    a("s_add_u32 s35, s35, s36")
    a("s_mul_i32 s35, s35, 1152")
    a("s_lshl_b32 s37, s24, 11")
    a("s_mul_i32 s36, s29, 1152")
    a("s_mul_i32 s33, s30, 288")
    a("s_add_u32 s36, s36, s33")
    a("s_mul_i32 s55, s24, 3")
    a("s_lshl_b32 s33, s24, 1")
    a("s_add_u32 s33, s33, 4")
    a("s_cmp_lt_u32 s24, 4")
    a("s_cselect_b32 s55, s55, s33")
    a("s_lshl_b32 s38, s55, 10")
    a(f"s_add_u32 s38, s38, {WB}")
    a("s_waitcnt lgkmcnt(0)")
    srd(a, 12, 4, 0, 2048 * 1152)
    srd(a, 16, 6, 0, 576 * 3456)
    ops = []
    def dma_x(s):
        sl = s % 4
        return [[f"s_add_u32 m0, s37, {sl*XS + i*1024}", f"s_add_u32 s40, s35, {i*9216 + s*128}",
                 f"buffer_load_dwordx4 v{vx[i]}, s[12:15], s40 offen lds"] for i in range(2)]
    def dma_w(s, nh=None):
        sl = s % 4
        out = []
        for i in range(3):
            g = [f"s_add_u32 m0, s38, {sl*WSZ + i*1024}", f"s_add_u32 s40, s36, {s*64*3456}",
                 f"buffer_load_dwordx4 v{vw[i]}, s[16:19], s40 offen lds"]
            if i == 2:
                if nh == 1: continue
                if nh is None:
                    lab[0] += 1
                    g = ["s_cmp_ge_u32 s24, 4", f"s_cbranch_scc1 {name}_pw{lab[0]}"] + g + [f"{name}_pw{lab[0]}:"]
            out.append(g)
        return out
    lab = [0]
    def emit(groups, tag):
        for g in groups:
            for x in g: a(x)
            ops.append(tag)
    def wait_for(tag):
        last = max(i for i, t in enumerate(ops) if t == tag)
        return len(ops) - 1 - last
    emit(dma_x(0), "s0")
    m20, sh20 = magic_div(20, 1408)
    a("s_lshl_b32 s33, s55, 6")
    a(f"s_mov_b32 s34, {m20}")
    for i in range(3):
        a(f"v_add_u32 v{t0}, s33, v{lane}")
        if i: a(f"v_add_u32 v{t0}, {64*i}, v{t0}")
        a(f"v_mul_lo_u32 v{t1}, v{t0}, s34")
        a(f"v_lshrrev_b32 v{t1}, {sh20}, v{t1}")
        a(f"v_mul_u32_u24 v{t2}, 20, v{t1}")
        a(f"v_sub_u32 v{t2}, v{t0}, v{t2}")
        a(f"v_lshrrev_b32 v{t3}, 2, v{t2}")
        a(f"v_mul_u32_u24 v{t3}, 72, v{t3}")
        a(f"v_and_b32 v{t4}, 3, v{t2}")
        a(f"v_lshl_add_u32 v{t3}, v{t4}, 4, v{t3}")
        a(f"v_lshrrev_b32 v{t5}, 1, v{t4}")
        a(f"v_lshl_add_u32 v{t3}, v{t5}, 3, v{t3}")
        a(f"v_mul_u32_u24 v{t4}, 72, v{t4}")
        a(f"v_add_u32 v{t4}, 32, v{t4}")
        a(f"v_cmp_gt_u32 vcc, 16, v{t2}")
        a(f"v_mul_u32_u24 v{t1}, 3456, v{t1}")
        a("s_nop 0")
        a(f"v_cndmask_b32 v{t3}, v{t4}, v{t3}, vcc")
        a(f"v_add_u32 v{vw[i]}, v{t1}, v{t3}")
    emit(dma_w(0), "s0")
    emit(dma_x(1) + dma_w(1), "s1")
    ops_lo = list(ops)
    ops_hi = [t for i, t in enumerate(ops) if i not in (4, 9)]
    srd(a, 20, 8, 0, 0x900000)
    srd(a, 52, 8, WS["STAT"], WS["CSUM"] - WS["STAT"] + 1728 * 4)
    srd(a, 56, 10, 0, 256)
    a(f"v_lshrrev_b32 v{vh}, 5, v{lane}")
    a(f"v_and_b32 v{tok}, 31, v{lane}")
    a(f"v_lshrrev_b32 v{t1}, 1, v{tok}")
    a(f"v_and_b32 v{t1}, 7, v{t1}")
    a("s_lshl_b32 s40, s31, 12")
    a(f"v_lshl_add_u32 v{t2}, v{tok}, 7, s40")
    for u in range(4):
        a(f"v_add_u32 v{t3}, {2*u}, v{vh}")
        a(f"v_xor_b32 v{t3}, v{t3}, v{t1}")
        a(f"v_lshl_add_u32 v{xaddr[u]}, v{t3}, 4, v{t2}")
    a(f"v_bfe_u32 v{t0}, v{lane}, 2, 2")
    a(f"v_lshl_add_u32 v{t0}, v{vh}, 3, v{t0}")
    a(f"v_mul_u32_u24 v{t0}, 320, v{t0}")
    a(f"v_add_u32 v{t0}, {WB}, v{t0}")
    a(f"v_and_b32 v{t1}, 3, v{lane}")
    a(f"v_lshlrev_b32 v{t2}, 4, v{t1}")
    a(f"v_add_u32 v{t2}, v{t2}, v{t0}")
    a(f"v_add_u32 v{wad[2][0]}, 256, v{t2}")
    a(f"v_add_u32 v{wad[2][1]}, {256+2*WSZ}, v{t2}")
    a(f"v_and_b32 v{t2}, 1, v{t1}")
    a(f"v_lshrrev_b32 v{t3}, 1, v{t1}")
    a(f"v_lshl_add_u32 v{t2}, v{t2}, 1, v{t3}")
    a(f"v_lshl_add_u32 v{t0}, v{t2}, 3, v{t0}")
    a(f"v_bfe_u32 v{t2}, v{lane}, 4, 1")
    a(f"v_lshl_add_u32 v{t0}, v{t2}, 5, v{t0}")
    a("s_and_b32 s39, s31, 1")
    for n in range(2):
        a(f"s_xor_b32 s40, s39, {n}")
        a("s_lshl_b32 s41, s32, 1")
        a("s_add_u32 s40, s40, s41")
        a("s_lshl_b32 s40, s40, 6")
        a(f"v_add_u32 v{wad[n][0]}, s40, v{t0}")
        a(f"v_add_u32 v{wad[n][1]}, {2*WSZ}, v{wad[n][0]}")
    for n in range(2):
        for i in range(16): a(f"v_mov_b32 v{acc[n]+i}, 0")
    for i in range(16): a(f"v_mov_b32 v{acce+i}, 0")
    for r in (R0, R1, CSM):
        for i in range(4): a(f"v_mov_b32 v{r+i}, 0")
    a(f"v_mov_b32 v{ones}, 0x3f803f80")
    ops[:] = ops_hi
    a(f"s_waitcnt vmcnt({wait_for('s0')})")
    a("s_barrier")
    prof_mark(a, 0)
    a("s_cmp_eq_u32 s32, 0")
    a(f"s_cbranch_scc0 {name}_nh1")
    ops_save = list(ops)

    def pre_epilogue():
        a("s_waitcnt vmcnt(0)")
        a("s_barrier")
        for n in range(2):
            a(f"s_xor_b32 s40, s39, {n}")
            a("s_lshl_b32 s41, s32, 1")
            a("s_add_u32 s40, s40, s41")
            a("s_mul_i32 s40, s40, 144")
            a(f"s_add_u32 s40, s40, {EX}")
            a(f"v_lshl_add_u32 v{t1}, v{vh}, 5, s40")
            for j, off in enumerate((0, 16, 80, 96)):
                a(f"ds_read_b128 {vr(cs[n]+4*j,4)}, v{t1} offset:{off}")
        a(f"v_mul_u32_u24 v{t1}, 144, v{vh}")
        a(f"v_add_u32 v{t1}, {EX}, v{t1}")
        for j in range(2):
            a(f"ds_read_b128 {vr(cx+4*j,4)}, v{t1} offset:{64 + 288*j}")
        a("s_lshl_b32 s40, s31, 8")
        a(f"s_add_u32 s40, s40, {EX + 1024}")
        a(f"v_lshl_add_u32 v{t1}, v{tok}, 3, s40")
        a(f"ds_read_b64 {vr(st,2)}, v{t1}")
        a("s_lshl_b32 s41, s27, 2")
        a("s_add_u32 s48, s31, s41")
        a("s_lshr_b32 s40, s48, 3")
        a(f"s_mul_i32 s53, s40, {KVC}")
        a("s_and_b32 s54, s48, 7")
        a("s_lshl_b32 s49, s54, 10")
        a("s_add_u32 s49, s49, s53")
        a("s_mul_i32 s50, s54, 1280")
        a("s_add_u32 s50, s50, s53")
        a("s_add_u32 s50, s50, 9216")
        a("s_lshl_b32 s51, s48, 10")
        a("s_cmp_eq_u32 s29, 0")
        a(f"s_cselect_b32 s45, {WS['QF1']}, {WS['KV']}")
        a(f"s_mov_b32 s46, {KVH}")
        a(f"s_cselect_b32 s46, 65536, s46")
        a("s_cselect_b32 s47, s51, s49")
        a("s_cselect_b32 s44, 0x3eae1a93, 1.0")
        a("s_cmp_eq_u32 s29, 2")
        a("s_cselect_b32 s47, s50, s47")
        a("s_cselect_b64 vcc, -1, 0")
        a("s_add_u32 s47, s47, s45")
        a(f"v_lshlrev_b32 v{vl}, 4, v{lane}")
        a(f"v_mul_u32_u24 v{t1}, 40, v{tok}")
        a(f"v_lshl_add_u32 v{t1}, v{vh}, 4, v{t1}")
        a(f"v_cndmask_b32 v{vl}, v{vl}, v{t1}, vcc")

    for nh in range(2):
        ops[:] = list(ops_lo if nh == 0 else ops_hi)
        if nh: a(f"{name}_nh1:")
        nA = 3 if nh == 0 else 2
        def reads(n):
            s, u, p = n >> 2, n & 3, n & 1
            sl = s % 4
            out = [f"ds_read_b128 {vr(Bf[p],4)}, v{xaddr[u]} offset:{sl*XS}"]
            for nn in range(nA):
                for jj in range(2):
                    off = (sl & 1) * WSZ + (16*u + 4*jj) * 320
                    out.append(f"ds_read_b64_tr_b16 {vr(Af[p][nn]+2*jj,2)}, v{wad[nn][sl>>1]} offset:{off}")
            return out
        for x in reads(0): a(x)
        nrd = 1 + 2 * nA
        for n in range(36):
            s, u, p = n >> 2, n & 3, n & 1
            fill = []
            if u == 2 and s < 8:
                a(f"s_waitcnt vmcnt({wait_for(f's{s+1}')})")
                a("s_barrier")
                if s + 3 <= 8: fill = [(g, f"s{s+3}") for g in dma_x(s + 3) + dma_w(s + 3, nh)]
            if n == 0: fill = [(g, "s2") for g in dma_x(2) + dma_w(2, nh)]
            if n == 30:
                prof_mark(a, 1)
                a("s_cmp_gt_u32 s24, 1")
                a(f"s_cbranch_scc1 {name}_nst{nh}")
                a(f"v_mov_b32 v{t1}, 0")
                a("s_mov_b32 s43, 0x200000")
                a(f"{name}_poll{nh}:")
                a(f"buffer_load_dword v{t0}, v{t1}, s[56:59], 0 offen sc1")
                a("s_waitcnt vmcnt(0)")
                a(f"v_readfirstlane_b32 s48, v{t0}")
                a("s_sub_u32 s43, s43, 1")
                a("s_cmp_eq_u32 s43, 0")
                a(f"s_cbranch_scc1 {name}_go{nh}")
                a("s_cmp_ge_u32 s48, 64")
                a(f"s_cbranch_scc1 {name}_go{nh}")
                a("s_sleep 1")
                a(f"s_branch {name}_poll{nh}")
                a(f"{name}_go{nh}:")
                a("s_mul_i32 s40, s29, 576")
                a("s_mul_i32 s41, s30, 144")
                a("s_add_u32 s40, s40, s41")
                a("s_lshl_b32 s40, s40, 2")
                a(f"s_add_u32 s40, s40, {WS['CSUM'] - WS['STAT']}")
                a("s_lshl_b32 s41, s27, 10")
                a("s_cmp_eq_u32 s24, 0")
                a("s_cselect_b32 s40, s40, s41")
                a("s_lshl_b32 s41, s24, 10")
                a(f"s_add_u32 m0, s41, {EX}")
                a(f"v_lshlrev_b32 v{t1}, 4, v{lane}")
                a(f"buffer_load_dwordx4 v{t1}, s[52:55], s40 offen sc1 lds")
                a(f"{name}_nst{nh}:")
                prof_mark(a, 2)
            if n == 34: pre_epilogue()
            rd = reads(n + 1) if n < 35 else []
            a("s_waitcnt lgkmcnt(0)")
            mf = [f"v_mfma_f32_32x32x16_bf16 {vr(acc[nn],16)}, {vr(Af[p][nn],4)}, {vr(Bf[p],4)}, {vr(acc[nn],16)}" for nn in range(2)]
            if nh == 0:
                mf.append(f"v_mfma_f32_32x32x16_bf16 {vr(acce,16)}, {vr(Af[p][2],4)}, {vr(Bf[p],4)}, {vr(acce,16)}")
            dots = []
            if 'nodots' in K1X: dots = []
            if 'nods' in K1X: rd = []
            if 'nob' in K1X: rd = rd[1:]
            if 'noa' in K1X: rd = rd[:1]
            if 'nodma' in K1X:
                for g, tag in fill: ops.append(tag)
                fill = []
            a(mf[0])
            for x in rd: a(x)
            per = -(-max(len(dots), 1) // len(mf))
            a(mf[1])
            for x in dots[:per]: a(x)
            if nh == 0: a(mf[2])
            for x in dots[per:]: a(x)
            for g, tag in fill: emit([g], tag)
        if nh == 0: a(f"s_branch {name}_epi")
    a(f"{name}_epi:")
    prof_mark(a, 3)
    a("s_nop 9")
    a("s_waitcnt lgkmcnt(0)")
    a(f"v_mov_b32 v{mean}, v{st}")
    a(f"v_mul_f32 v{rs}, s44, v{st+1}")
    def norm(dst, accb, csb, nreg):
        for i in range(nreg):
            a(f"v_fma_f32 v{accb+i}, -v{mean}, v{csb+i}, v{accb+i}")
        for i in range(nreg):
            a(f"v_mul_f32 v{accb+i}, v{rs}, v{accb+i}")
        for i in range(nreg // 2):
            a(f"v_cvt_pk_bf16_f32 v{dst+i}, v{accb+2*i}, v{accb+2*i+1}")
    for n in range(2):
        dst = pk if n == 0 else cs[0]
        norm(dst, acc[n], cs[n], 16)
        a(f"s_xor_b32 s40, s39, {n}")
        a("s_lshl_b32 s41, s32, 1")
        a("s_add_u32 s40, s40, s41")
        a("s_lshl_b32 s41, s30, 2")
        a("s_add_u32 s40, s40, s41")
        a("s_lshl_b32 s40, s40, 1")
        a("s_mul_i32 s40, s40, s46")
        a("s_add_u32 s40, s40, s47")
        a(f"buffer_store_dwordx4 {vr(dst,4)}, v{vl}, s[20:23], s40 offen{K1SC}")
        a("s_add_u32 s40, s40, s46")
        a(f"buffer_store_dwordx4 {vr(dst+4,4)}, v{vl}, s[20:23], s40 offen{K1SC}")
    a("s_cmp_eq_u32 s32, 0")
    a(f"s_cbranch_scc0 {name}_fin")
    a(f"{name}_ext:")
    ep = cs[1]
    norm(ep, acce, cx, 8)
    a("s_cmp_eq_u32 s29, 2")
    a(f"s_cbranch_scc1 {name}_extv")
    a("s_lshl_b32 s51, s48, 7")
    a(f"s_add_u32 s51, s51, {WS['QF2']}")
    a("s_lshl_b32 s41, s54, 7")
    a("s_add_u32 s40, s53, s41")
    a(f"s_add_u32 s40, s40, {WS['KV'] + 8192}")
    a("s_cmp_eq_u32 s29, 0")
    a("s_cselect_b32 s51, s51, s40")
    a(f"s_mov_b32 s52, {KVH}")
    a(f"s_cselect_b32 s52, 8192, s52")
    for j in range(2):
        a("s_lshl_b32 s40, s30, 2")
        a(f"s_add_u32 s40, s40, {2*j}")
        a(f"v_add_u32 v{t1}, s40, v{vh}")
        a(f"v_lshlrev_b32 v{t1}, 1, v{t1}")
        a(f"v_mul_lo_u32 v{t1}, v{t1}, s52")
        a(f"v_lshl_add_u32 v{t1}, v{tok}, 2, v{t1}")
        a(f"buffer_store_dword v{ep+2*j}, v{t1}, s[20:23], s51 offen{K1SC}")
        a("s_add_u32 s40, s51, s52")
        a(f"buffer_store_dword v{ep+2*j+1}, v{t1}, s[20:23], s40 offen{K1SC}")
    a(f"s_branch {name}_fin")
    a(f"{name}_extv:")
    a(f"s_add_u32 s51, s50, {WS['KV'] + 32}")
    a(f"s_mov_b32 s52, {KVH}")
    for j in range(2):
        a("s_lshl_b32 s40, s30, 2")
        a(f"s_add_u32 s40, s40, {2*j}")
        a(f"v_add_u32 v{t1}, s40, v{vh}")
        a(f"v_lshlrev_b32 v{t1}, 1, v{t1}")
        a(f"v_mul_lo_u32 v{t1}, v{t1}, s52")
        a(f"v_mul_u32_u24 v{t2}, 40, v{tok}")
        a(f"v_add_u32 v{t1}, v{t1}, v{t2}")
        for hb in range(2):
            d = ep + 4 + 4*j + 2 * hb
            a(f"v_mov_b32 v{d}, v{ep+2*j+hb}")
            a(f"v_mov_b32 v{d+1}, 0x00003f80")
            if hb: a("s_add_u32 s40, s51, s52")
            else: a("s_mov_b32 s40, s51")
            a(f"buffer_store_dwordx2 {vr(d,2)}, v{t1}, s[20:23], s40 offen{K1SC}")
    a(f"{name}_fin:")
    prof_end(a, 1, 8)
    a("s_endpgm")
    a(f"{name}_spare:")
    gen_spare(a, name, acc, acce, cs, [t0, t1, t2, t3, t4, t5, lane], V)
    a(f"{name}_end:")
    a("s_endpgm")
    kernel_end(a, name, V.hi, (V.hi + 3) // 4 * 4)
    return a.text(), EX + 2048
```

```python
import sys, os
sys.path.insert(0, os.path.dirname(__file__))
sys.path.insert(0, os.path.join(os.path.dirname(__file__), ".."))
from asmlib import *
import hazard
import k0, k1

DESCR = """;
"""

def build(which=None):
    parts = []
    launches = []
    def add(name, text, grid, block, lds):
        parts.append(text); launches.append((name, grid, block, lds))
    t, lds = k1.gen_k1(); add("qkv_kernel", t, 256, 512, lds)
    for modname, fn, kname in EXTRA:
        mod = __import__(modname)
        t, grid, block, lds = getattr(mod, fn)()
        add(kname, t, grid, block, lds)
    hdr = open(os.path.join(os.path.dirname(__file__), "header.txt")).read()
    for n, g, b, l in launches:
        hdr += f"; @launch kernel={n} grid=({g},1,1) block=({b},1,1) lds={l}\n"
    hdr += DESCR
    body = '.amdgcn_target "amdgcn-amd-amdhsa--gfx950"\n.text\ncode_begin:\n' + "".join(parts[:-1])
    last = parts[-1]
    k = last.rindex('.section .rodata')
    body += last[:k] + "code_end:\n" + last[k:]
    n = hazard.check(body)
    print("hazards:", n)
    return hdr + body

EXTRA = []
if __name__ == "__main__":
    import importlib
    spec = os.path.join(os.path.dirname(__file__), "extra.txt")
    if os.path.exists(spec):
        for line in open(spec):
            if line.strip(): EXTRA.append(tuple(line.split()))
    out = sys.argv[1]
    open(out, "w").write(build())
```
